```python
import torch

def _softmax(x, axis=-1):
    return torch.softmax(x, dim=axis)
def _gelu(x):
    return torch.nn.functional.gelu(x, approximate="tanh")
def _silu(x):
    return torch.nn.functional.silu(x)
def _sigmoid(x):
    return torch.sigmoid(x)
def _layernorm(x, axis=-1, eps=1e-5):
    m = x.mean(dim=axis, keepdim=True)
    v = x.var(dim=axis, keepdim=True, unbiased=False)
    return (x - m) / torch.sqrt(v + eps)
def _scatter_add(tgt, idx, src, axis=0):
    return tgt.clone().index_add_(axis, idx, src)
def _segment_sum(src, seg, n):
    out = torch.zeros((n,) + src.shape[1:], dtype=src.dtype)
    return out.index_add_(0, seg, src)
def _pad(x, pw):
    flat = tuple(v for pair in reversed(pw) for v in pair)
    return torch.nn.functional.pad(x, flat)

kernel_name = 'interleave_layers__sliding_block_cached__dense_activation_silu__decode'

def setup_inputs():

    _w = (lambda a: (lambda t: t.to(torch.bfloat16) if t.is_floating_point() else t)(torch.as_tensor(a)))
    def _A_setup():
        B, Sq, D = 4, 1, 512
        Hq, Hkv, Sk, Dh = 32, 8, 4096, 128
        assert Hq % Hkv == 0, (Hq, Hkv)
        return {
            "x": _w((lambda *s: torch.randn(*s, dtype=torch.bfloat16) * 0.1)(B, Sq, D)),
            "k_cache": _w((lambda *s: torch.randn(*s, dtype=torch.bfloat16) * 0.8)(B, Hkv, Sk, Dh)),
            "v_cache": _w((lambda *s: torch.randn(*s, dtype=torch.bfloat16) * 3.2)(B, Hkv, Sk, Dh)),
            "wq": _w((lambda *s: torch.randn(*s, dtype=torch.bfloat16) * 0.8)(D, Hq * Dh) * (D ** -0.5)),
            "wo": _w((lambda *s: torch.randn(*s, dtype=torch.bfloat16) * 3.2)(Hq * Dh, D) * ((Hq * Dh) ** -0.5)),
        }
    _A_in = _A_setup()

    def _B_setup():
        B, S, D, F = 4, 1, 512, 1792
        return {
            "x": _w((lambda *s: torch.randn(*s, dtype=torch.bfloat16) * 0.1)(B, S, D)),
            "w1": _w((lambda *s: torch.randn(*s, dtype=torch.bfloat16) * 1.6)(D, F) * (D ** -0.5)),
            "w2": _w((lambda *s: torch.randn(*s, dtype=torch.bfloat16) * 0.4)(F, D) * (F ** -0.5)),
        }
    _B_in = _B_setup()

    return {
        "A_x": _A_in["x"],
        "A_k_cache": _A_in["k_cache"],
        "A_v_cache": _A_in["v_cache"],
        "A_wq": _A_in["wq"],
        "A_wo": _A_in["wo"],
        "B_x": _B_in["x"],
        "B_w1": _B_in["w1"],
        "B_w2": _B_in["w2"],
    }

def reference(A_x, A_k_cache, A_v_cache, A_wq, A_wo, B_x, B_w1, B_w2):
    def _A_ref(x, k_cache, v_cache, wq, wo):
        B, Sq, D = x.shape
        Hq, Dh = 32, 128
        Hkv, Sk = k_cache.shape[1], k_cache.shape[2]
        W = min(4096, max(256, Sk // 4))
        rep = Hq // Hkv
        q = (lambda x, *d: x.permute(*d))((x @ wq).reshape(B, Sq, Hq, Dh), 0, 2, 1, 3)
        k = (lambda x, n, axis: torch.repeat_interleave(x, n, dim=axis))(k_cache[:, :, Sk - W:, :], rep, axis=1)
        v = (lambda x, n, axis: torch.repeat_interleave(x, n, dim=axis))(v_cache[:, :, Sk - W:, :], rep, axis=1)
        scores = torch.einsum("bhqd,bhkd->bhqk", q, k) * (Dh ** -0.5)
        p = _softmax(scores, axis=-1)
        o = torch.einsum("bhqk,bhkd->bhqd", p, v)
        return (lambda x, *d: x.permute(*d))(o, 0, 2, 1, 3).reshape(B, Sq, Hq * Dh) @ wo

    def _B_ref(x, w1, w2):
        h = torch.einsum("bsd,df->bsf", x, w1)
        h = _silu(h)
        out = torch.einsum("bsf,fd->bsd", h, w2)
        return out

    x = A_x
    x = x + _A_ref(_layernorm(x, axis=-1), A_k_cache, A_v_cache, A_wq, A_wo)
    x = x + _B_ref(_layernorm(x, axis=-1), B_w1, B_w2)
    x = x + _A_ref(_layernorm(x, axis=-1), A_k_cache, A_v_cache, A_wq, A_wo)
    x = x + _B_ref(_layernorm(x, axis=-1), B_w1, B_w2)
    return x
```

```python
import re

TRANS = {'v_exp_f32', 'v_log_f32', 'v_rcp_f32', 'v_rsq_f32', 'v_sqrt_f32', 'v_sin_f32', 'v_cos_f32'}


def regs(op):
    op = op.strip()
    neg = op.lstrip('-').replace('abs(', '').replace(')', '').replace('|', '')
    m = re.fullmatch(r'([vs])(\d+)', neg)
    if m:
        return [(m.group(1), int(m.group(2)))]
    m = re.fullmatch(r'([vs])\[(\d+):(\d+)\]', neg)
    if m:
        return [(m.group(1), i) for i in range(int(m.group(2)), int(m.group(3)) + 1)]
    if neg == 'vcc':
        return [('s', 'vcc')]
    if neg == 'm0':
        return [('s', 'm0')]
    return []


class Asm:
    def __init__(self):
        self.lines = []
        self.pos = 0
        self.st = {}
        self.pending = {}
        self.dead = False
        self.maxv = 0
        self.maxs = 0
        self.uid = 0
        self.dop = {}

    def newlabel(self, base='L'):
        self.uid += 1
        return f'{base}_{self.uid}'

    def raw(self, s):
        self.lines.append(s)

    def comment(self, s):
        self.lines.append(f'    ; {s}')

    def _ages(self):
        return {k: self.pos - p for k, p in self.st.items() if self.pos - p < 24}

    def label(self, name):
        preds = self.pending.pop(name, [])
        if not self.dead:
            preds = preds + [self._ages()]
        merged = {}
        for a in preds:
            for k, v in a.items():
                merged[k] = min(merged.get(k, 99), v)
        self.st = {k: self.pos - v for k, v in merged.items()}
        self.dead = False
        self.lines.append(f'{name}:')

    def settle(self, n=10):
        worst = 0
        for (kind, r), p in self.st.items():
            need = {'mfma': 8, 'mfmac': 3, 'valu': 2, 'trans': 1, 'vsgpr': 5, 'st4': 2, 'm0': 1}[kind]
            worst = max(worst, need - (self.pos - p - 1))
        if worst > 0:
            self.nop(worst)

    def nop(self, n):
        while n > 0:
            k = min(n, 16)
            self.lines.append(f'    s_nop {k - 1}')
            self.pos += k
            n -= k

    def _need(self, kind, r, ws):
        p = self.st.get((kind, r))
        if p is None:
            return 0
        return max(0, ws - (self.pos - p - 1))

    def __call__(self, text):
        for ln in text.strip().split('\n'):
            ln = ln.split(';')[0].strip()
            if ln:
                self.ins(ln)

    def ins(self, ln):
        parts = ln.split(None, 1)
        mn = parts[0]
        rest = parts[1] if len(parts) > 1 else ''
        ops = []
        depth = 0
        cur = ''
        for ch in rest:
            if ch in '[(':
                depth += 1
            if ch in '])':
                depth -= 1
            if ch == ',' and depth == 0:
                ops.append(cur.strip())
                cur = ''
            else:
                cur += ch
        if cur.strip():
            ops.append(cur.strip())
        mods = ''
        if ops:
            last = ops[-1].split(None, 1)
            ops[-1] = last[0]
            mods = last[1] if len(last) > 1 else ''
        for o in ops:
            for k, r in regs(o):
                if isinstance(r, int):
                    if k == 'v':
                        self.maxv = max(self.maxv, r)
                    else:
                        self.maxs = max(self.maxs, r)
        need = 0
        writes = []
        base = mn.replace('_e32', '').replace('_e64', '').replace('_dpp', '')
        V = lambda o: [r for k, r in regs(o) if k == 'v']
        S = lambda o: [r for k, r in regs(o) if k == 's']
        if mn.startswith('v_mfma'):
            assert '16x16x32' in mn, mn
            d, a, b, c = ops
            for r in V(a) + V(b):
                need = max(need, self._need('valu', r, 2), self._need('mfma', r, 8))
            for r in V(c):
                need = max(need, self._need('valu', r, 2))
                if self.dop.get(r) != c:
                    need = max(need, self._need('mfma', r, 6))
            for r in V(d):
                if self.dop.get(r) != d:
                    need = max(need, self._need('mfma', r, 6))
                need = max(need, self._need('st4', r, 2))
            writes = [('mfma', r) for r in V(d)] + [('mfmac', r) for r in V(c)]
            for r in V(d):
                self.dop[r] = d
        elif mn.startswith('v_'):
            isdpp = mn.endswith('_dpp')
            if base.startswith('v_cmp'):
                dv, ds_, srcs = [], S(ops[0]), ops[1:]
            elif base in ('v_readfirstlane_b32', 'v_readlane_b32'):
                dv, ds_, srcs = [], S(ops[0]), ops[1:]
                for r in V(ops[1]):
                    need = max(need, self._need('valu', r, 1))
            elif base.startswith('v_permlane'):
                dv, ds_, srcs = V(ops[0]) + V(ops[1]), [], ops
                for r in dv:
                    need = max(need, self._need('valu', r, 2))
            elif base in ('v_add_co_u32', 'v_addc_co_u32'):
                dv, ds_, srcs = V(ops[0]), S(ops[1]), ops[2:]
            else:
                dv, ds_, srcs = V(ops[0]), [], ops[1:]
                if base in ('v_fmac_f32', 'v_dot2c_f32_bf16'):
                    srcs = ops
            sv = [r for o in srcs for r in V(o)]
            ss = [r for o in srcs for r in S(o)]
            if isdpp:
                for r in V(ops[1]):
                    need = max(need, self._need('valu', r, 2))
            for r in sv + dv:
                need = max(need, self._need('mfma', r, 8))
            for r in dv:
                need = max(need, self._need('mfmac', r, 3), self._need('st4', r, 2))
            if base not in TRANS:
                for r in sv:
                    need = max(need, self._need('trans', r, 1))
            for r in ss:
                need = max(need, self._need('vsgpr', r, 2))
            writes = [('valu', r) for r in dv] + [('vsgpr', r) for r in ds_]
            if base in TRANS:
                writes += [('trans', r) for r in dv]
            else:
                for r in dv:
                    self.st.pop(('trans', r), None)
        elif mn.startswith('buffer_'):
            lds = ' lds' in (' ' + mods)
            allv = [r for o in ops for r in V(o)]
            alls = [r for o in ops for r in S(o)]
            for r in allv:
                need = max(need, self._need('mfma', r, 8))
            for r in alls:
                need = max(need, self._need('vsgpr', r, 5))
            if lds:
                need = max(need, self._need('m0', 'm0', 1))
            if mn.startswith('buffer_load') and not lds:
                for r in V(ops[0]):
                    need = max(need, self._need('st4', r, 1), self._need('mfmac', r, 3))
            if mn in ('buffer_store_dwordx4', 'buffer_store_dwordx3'):
                writes = [('st4', r) for r in V(ops[0])]
        elif mn.startswith('ds_'):
            allv = [r for o in ops for r in V(o)]
            for r in allv:
                need = max(need, self._need('mfma', r, 8))
            if mn.startswith('ds_read'):
                for r in V(ops[0]):
                    need = max(need, self._need('st4', r, 1), self._need('mfmac', r, 3))
        elif mn == 's_nop':
            self.nop(int(ops[0]) + 1)
            return
        elif mn.startswith('s_'):
            if ops and ops[0] == 'm0' and not mn.startswith('s_cmp'):
                writes = [('m0', 'm0')]
        else:
            raise ValueError(ln)
        if need:
            self.nop(need)
        self.lines.append('    ' + ln)
        for k in writes:
            self.st[k] = self.pos
        self.pos += 1
        if mn.startswith('s_cbranch') or mn == 's_branch':
            self.pending.setdefault(ops[0], []).append(self._ages())
            if mn == 's_branch':
                self.dead = True
        if mn == 's_endpgm':
            self.dead = True

    def text(self):
        return '\n'.join(self.lines) + '\n'
```

```python
import sys, struct
from asmlib import Asm

NAME = 'interleave_layers__sliding_block_cached__dense_activation_silu__decode'
DIAG = '--diag' in sys.argv
def opt(name, default):
    for a in sys.argv:
        if a.startswith(f'--{name}='):
            return int(a.split('=')[1], 0)
    return default
NWO_EARLY = opt('nwo', 4)
NT = 'nt' if opt('nt', 1) else ''

def f2u(x):
    return struct.unpack('<I', struct.pack('<f', x))[0]

QA, OA, LSEA, X2A, CPY = 0x00000, 0x08000, 0x28000, 0x29000, 0x31000
XP, FP, LAY = 0x62000, 0x6A000, 0xA2000
WSN = 2 * LAY
STAMP_BASE = 0x200000
BIG = 0x40000000
LIMIT = 0x200000
sG, sM, sW, sLay, sIt, sT0, sT1, sPo = 's3', 's4', 's5', 's6', 's7', 's8', 's9', 's10'
WS, XS, R1, R2, R3, DBG = 's[40:43]', 's[44:47]', 's[48:51]', 's[52:55]', 's[56:59]', 's[60:63]'
STS = 's[76:79]'
sPermLo, sPermHi = 's38', 's39'

a = Asm()

def srd(n, lo, size):
    a(f'''s_mov_b32 s{n}, s{lo}
    s_mov_b32 s{n+1}, s{lo+1}
    s_mov_b32 s{n+2}, {hex(size)}
    s_mov_b32 s{n+3}, 0x20000''')

def q(n, k=4):
    return f'v[{n}:{n+k-1}]'

def mfma(d, x, y, c=None):
    a(f'v_mfma_f32_16x16x32_bf16 {q(d)}, {q(x)}, {q(y)}, {q(c) if c is not None else 0}')

NSTAMP = 11
def stamp(k):
    if DIAG:
        a(f's_memrealtime s[{80+2*k}:{81+2*k}]')

def dump_stamps(vt, vz):
    if not DIAG:
        return
    a(f'''s_waitcnt lgkmcnt(0)
    s_lshl_b32 {sT0}, s2, 3
    s_add_u32 {sT0}, {sT0}, {sW}
    s_lshl_b32 {sT0}, {sT0}, 7
    s_cmp_lg_u32 {sLay}, 0
    s_cselect_b32 {sT1}, 64, 0
    s_add_u32 {sT0}, {sT0}, {sT1}
    s_add_u32 {sT0}, {sT0}, {hex(STAMP_BASE)}
    v_mov_b32 v{vz}, 0''')
    for k in range(NSTAMP):
        a(f'''v_mov_b32 v{vt}, s{80+2*k}
        buffer_store_dword v{vt}, v{vz}, {STS}, {sT0} offen offset:{4*k}
        s_mov_b32 s{80+2*k}, 0''')

def check(rs, vt):
    rs = list(rs)
    if len(rs) == 1:
        a(f'v_cmp_eq_u32 vcc, -1, v{rs[0]}')
        return
    if len(rs) == 2:
        a(f'v_max_u32 v{vt}, v{rs[0]}, v{rs[1]}')
    else:
        if len(rs) >= 8:
            h = len(rs) // 2
            ra, rb = rs[:h], rs[h:]
            seqs = []
            for rr, t in ((ra, vt), (rb, vt + 1)):
                s = [f'v_max3_u32 v{t}, v{rr[0]}, v{rr[1]}, v{rr[2]}']
                rr = rr[3:]
                while len(rr) >= 2:
                    s.append(f'v_max3_u32 v{t}, v{t}, v{rr[0]}, v{rr[1]}')
                    rr = rr[2:]
                seqs.append((s, rr))
            (s0, r0), (s1, r1) = seqs
            for i in range(max(len(s0), len(s1))):
                if i < len(s0): a(s0[i])
                if i < len(s1): a(s1[i])
            left = r0 + r1
            if len(left) == 2:
                a(f'v_max3_u32 v{vt}, v{vt}, v{left[0]}, v{left[1]}')
                a(f'v_max_u32 v{vt}, v{vt}, v{vt+1}')
            elif len(left) == 1:
                a(f'v_max3_u32 v{vt}, v{vt}, v{vt+1}, v{left[0]}')
            else:
                a(f'v_max_u32 v{vt}, v{vt}, v{vt+1}')
        else:
            a(f'v_max3_u32 v{vt}, v{rs[0]}, v{rs[1]}, v{rs[2]}')
            rs = rs[3:]
            while len(rs) >= 2:
                a(f'v_max3_u32 v{vt}, v{vt}, v{rs[0]}, v{rs[1]}')
                rs = rs[2:]
            if rs:
                a(f'v_max_u32 v{vt}, v{vt}, v{rs[0]}')
    a(f'v_cmp_eq_u32 vcc, -1, v{vt}')

def poll(issue, rs, vt, sbase, dual, entry=None):
    top = a.newlabel('POLL')
    a(f's_mov_b32 {sIt}, 0')
    if dual:
        a(f's_mov_b32 {sPo}, {sbase}')
    a.label(top)
    issue(sPo if dual else sbase)
    if entry:
        a.label(entry)
    a(f's_add_u32 {sIt}, {sIt}, 1')
    if dual:
        a(f'''s_and_b32 {sT0}, {sIt}, 255
        s_cmp_eq_u32 {sT0}, 255
        s_cselect_b32 {sT0}, {hex(CPY)}, 0
        s_add_u32 {sPo}, {sbase}, {sT0}''')
    a(f'''s_cmp_gt_u32 {sIt}, {hex(LIMIT)}
    s_cbranch_scc1 L_END
    s_waitcnt vmcnt(0)''')
    check(rs, vt)
    a(f's_cbranch_vccnz {top}')

def flag_spin(vf, voff):
    top = a.newlabel('FLAG')
    a(f's_mov_b32 {sIt}, 0')
    a.label(top)
    a(f'''s_sleep 1
    buffer_load_dword v{vf}, v{voff}, {DBG}, 0 offen offset:64 sc1
    s_add_u32 {sIt}, {sIt}, 1
    s_cmp_gt_u32 {sIt}, {hex(LIMIT)}
    s_cbranch_scc1 L_END
    s_waitcnt vmcnt(0)
    v_cmp_eq_u32 vcc, 0, v{vf}
    s_cbranch_vccnz {top}''')

def perm_pair(raw, dst, i):
    for c in range(4):
        r0, r1 = raw + 8 * i + c, raw + 8 * i + 4 + c
        a(f'v_perm_b32 v{dst + 8*c + i}, v{r1}, v{r0}, {sPermLo}')
        a(f'v_perm_b32 v{dst + 8*c + 4 + i}, v{r1}, v{r0}, {sPermHi}')

def unpack4(dst, src):
    a(f'''v_lshlrev_b32 v{dst}, 16, v{src}
    v_and_b32 v{dst+1}, 0xffff0000, v{src}
    v_lshlrev_b32 v{dst+2}, 16, v{src+1}
    v_and_b32 v{dst+3}, 0xffff0000, v{src+1}''')

def selector(dst, vidx, vt):
    a(f'''v_and_b32 v{vt}, 1, v{vidx}
    v_lshlrev_b32 v{vt}, 4, v{vt}
    v_mov_b32 v{vt+1}, 0x3f80
    v_lshlrev_b32 v{vt}, v{vt}, v{vt+1}
    v_lshrrev_b32 v{vt+1}, 1, v{vidx}''')
    for i in range(4):
        a(f'''v_cmp_eq_u32 vcc, {i}, v{vt+1}
        v_cndmask_b32 v{dst+i}, 0, v{vt}, vcc''')

vL, vC, vG = 1, 2, 3
a(f'''s_cmp_ge_u32 s2, 0x100
s_cbranch_scc1 L_END
s_load_dwordx16 s[16:31], s[0:1], 0
s_load_dwordx4 s[32:35], s[0:1], 64
s_load_dwordx2 s[36:37], s[0:1], 80''')
if DIAG:
    for k in range(1, NSTAMP):
        a(f's_mov_b32 s{80+2*k}, 0')
stamp(0)
a(f'''v_lshrrev_b32 v4, 6, v0
v_and_b32 v{vL}, 63, v0
s_and_b32 {sG}, s2, 7
v_readfirstlane_b32 {sW}, v4
s_lshr_b32 {sM}, s2, 3
v_and_b32 v{vC}, 15, v0
v_bfe_u32 v{vG}, v0, 4, 2
s_mov_b32 {sLay}, 0
s_mov_b32 {sPermLo}, 0x05040100
s_mov_b32 {sPermHi}, 0x07060302
s_cmp_ge_u32 {sM}, 16
s_cbranch_scc1 L_ROLE_B''')

vKo, vVo, vFo, vKr = 4, 5, 6, 7
vQo, vOw, vMw, vMr, vLw = 11, 12, 13, 14, 15
K_, VR, VT, Q_, S_, P_, DL, ON = 16, 48, 80, 112, 128, 136, 140, 144
D_ = VR
vT = 148
vCr, vPo, vPl, vRx, vRf, vRo, vM = 164, 165, 166, 167, 168, 169, 170
SEL, RES, RESC = 172, 176, 180
vFl = 171
sKV, sKV2, sQb, sOb, sXb, sFb, sFb2, sX2b, sC1, sJ = 's64', 's65', 's66', 's67', 's68', 's69', 's70', 's71', 's72', 's73'
MB = 0x10000
a(f'''s_lshr_b32 {sT0}, {sM}, 2
s_lshl_b32 {sT0}, {sT0}, 3
s_add_u32 {sT0}, {sT0}, {sG}
s_lshl_b32 {sKV}, {sT0}, 20
s_and_b32 {sT0}, {sM}, 3
s_lshl_b32 {sT0}, {sT0}, 16
s_add_u32 {sKV}, {sKV}, {sT0}
s_lshl_b32 {sT1}, {sW}, 13
s_add_u32 {sKV}, {sKV}, {sT1}
s_add_u32 {sKV}, {sKV}, 0xC0000
s_add_u32 {sKV2}, {sKV}, 0x1000
v_xor_b32 v{vKo}, v{vG}, v{vC}
v_lshlrev_b32 v{vKo}, 4, v{vKo}
v_lshl_add_u32 v{vKo}, v{vG}, 8, v{vKo}
v_lshlrev_b32 v{vVo}, 4, v{vC}
v_lshl_add_u32 v{vVo}, v{vG}, 10, v{vVo}
s_mov_b32 m0, {sT1}
s_waitcnt lgkmcnt(0)''')
stamp(10)
srd(48, 18, 0x2000000)
for i in range(4):
    a(f'buffer_load_dwordx4 v{vKo}, {R1}, {sKV} offen offset:{i*1024} {NT} lds')
a(f's_add_u32 {sT1}, {sT1}, 0x1000\ns_mov_b32 m0, {sT1}')
srd(52, 20, 0x2000000)
for i in range(4):
    a(f'buffer_load_dwordx4 v{vKo}, {R1}, {sKV2} offen offset:{i*1024} {NT} lds')
for j in range(4):
    a(f'buffer_load_dwordx4 {q(VR+4*j)}, v{vVo}, {R2}, {sKV} offen offset:{j*256} {NT}')
srd(60, 34, 256)
a(f'''v_mov_b32 v{vFo}, 0
buffer_load_dword v{vFl}, v{vFo}, {DBG}, 0 offen offset:64 sc1''')
for j in range(4):
    a(f'buffer_load_dwordx4 {q(VR+16+4*j)}, v{vVo}, {R2}, {sKV2} offen offset:{j*256} {NT}')
stamp(1)
srd(40, 36, WSN)
srd(44, 16, 4096)
srd(56, 32, 4096)
if DIAG:
    srd(76, 36, 0x400000)
a(f'''s_lshl_b32 {sT1}, {sW}, 13
v_and_b32 v{vT}, 3, v{vC}
v_lshlrev_b32 v{vT}, 4, v{vT}
v_lshl_add_u32 v{vQo}, v{vG}, 6, v{vT}
v_lshl_add_u32 v{vT}, v{vC}, 8, v{vQo}
v_add_u32 v{vKr}, {sT1}, v{vT}
v_xor_b32 v{vKr+1}, 16, v{vKr}
v_xor_b32 v{vKr+2}, 32, v{vKr}
v_xor_b32 v{vKr+3}, 48, v{vKr}
v_lshrrev_b32 v{vT}, 2, v{vC}
v_lshl_add_u32 v{vQo}, v{vT}, 8, v{vQo}
v_lshlrev_b32 v{vOw}, 4, v{vL}
v_add_u32 v{vOw}, {sT1}, v{vOw}
s_lshl_b32 {sT0}, {sW}, 2
s_add_u32 {sT0}, {sT0}, {hex(MB)}
v_lshlrev_b32 v{vMw}, 5, v{vT}
v_add_u32 v{vMw}, {sT0}, v{vMw}
v_lshlrev_b32 v{vMr}, 5, v{vG}
v_add_u32 v{vLw}, {sT0}, v{vMr}
v_add_u32 v{vMr}, {hex(MB)}, v{vMr}
s_mov_b32 {sC1}, {hex(f2u(1.4426950408889634 * 128 ** -0.5))}
s_lshl_b32 {sQb}, {sG}, 12
s_lshr_b32 {sT0}, {sM}, 2
s_lshl_b32 {sT0}, {sT0}, 10
s_add_u32 {sQb}, {sQb}, {sT0}''')
for i in range(4):
    a(f'v_mov_b32 v{ON+i}, 0x3f803f80')
a(f'''s_and_b32 {sT0}, {sW}, 3
v_lshrrev_b32 v{vT}, 2, v{vL}
v_lshlrev_b32 v{vCr}, 4, v{vT}
v_bfe_u32 v{vT}, v{vL}, 1, 1
v_lshl_add_u32 v{vCr}, v{vT}, 10, v{vCr}
v_and_b32 v{vT}, 1, v{vL}
v_lshl_add_u32 v{vCr}, v{vT}, 3, v{vCr}
s_lshl_b32 {sT1}, {sT0}, 8
v_add_u32 v{vCr}, {sT1}, v{vCr}
v_lshrrev_b32 v{vT}, 2, v{vL}
v_lshlrev_b32 v{vPo}, 8, v{vT}
v_and_b32 v{vT}, 3, v{vL}
v_lshl_add_u32 v{vPo}, v{vT}, 2, v{vPo}
s_lshl_b32 {sOb}, {sG}, 14
s_lshl_b32 {sT1}, {sT0}, 12
s_add_u32 {sOb}, {sOb}, {sT1}
s_lshl_b32 {sT1}, {sM}, 4
s_add_u32 {sOb}, {sOb}, {sT1}
s_add_u32 {sOb}, {sOb}, {hex(OA)}
v_add_u32 v{vPo}, {sOb}, v{vPo}
s_lshl_b32 {sOb}, {sG}, 8
s_lshl_b32 {sT1}, {sT0}, 6
s_add_u32 {sOb}, {sOb}, {sT1}
s_lshl_b32 {sT1}, {sM}, 2
s_add_u32 {sOb}, {sOb}, {sT1}
s_add_u32 {sOb}, {sOb}, {hex(LSEA)}
s_lshl_b32 {sT0}, {sT0}, 4
v_mov_b32 v{vPl}, {sOb}
v_mov_b32 v{vT}, {hex(BIG)}
v_cmp_eq_u32 vcc, {sT0}, v{vL}
v_cndmask_b32 v{vPl}, v{vT}, v{vPl}, vcc''')
a(f'''s_lshl_b32 {sJ}, {sM}, 1
s_and_b32 {sT0}, {sW}, 1
s_add_u32 {sJ}, {sJ}, {sT0}
s_and_b32 {sT0}, {sJ}, 7
s_lshl_b32 {sXb}, {sT0}, 12
s_lshr_b32 {sT1}, {sJ}, 3
s_lshl_b32 {sT1}, {sT1}, 7
s_add_u32 {sXb}, {sXb}, {sT1}
s_add_u32 {sXb}, {sXb}, {hex(XP)}
s_mul_i32 {sFb}, {sJ}, 7168
s_add_u32 {sFb}, {sFb}, {hex(FP)}
s_lshl_b32 {sX2b}, {sJ}, 7
v_lshrrev_b32 v{vT}, 3, v{vL}
v_lshlrev_b32 v{vRx}, 9, v{vT}
v_and_b32 v{vT}, 7, v{vL}
v_lshl_add_u32 v{vRx}, v{vT}, 4, v{vRx}
v_lshlrev_b32 v{vRf}, 4, v{vL}
v_lshlrev_b32 v{vRo}, 4, v{vT}
v_and_b32 v{vT+1}, 1, v{vG}
v_lshl_add_u32 v{vRo}, v{vT+1}, 3, v{vRo}''')
selector(SEL, vT, vT + 2)
a('s_waitcnt vmcnt(9)')
stamp(2)
for blk in range(2):
    for t in range(4):
        a(f'ds_read_b128 {q(K_ + 16*blk + 4*t)}, v{vKr+t} offset:{blk*4096}')
a(f'''s_waitcnt vmcnt(4)
v_cmp_eq_u32 vcc, 0, v{vFl}
s_cbranch_vccz L_A_FLAG_OK''')
flag_spin(vFl, vFo)
a.label('L_A_FLAG_OK')
stamp(3)
def issue_q(so):
    a(f'buffer_load_dwordx4 {q(P_)}, v{vQo}, {WS}, {so} offen sc1')
issue_q(sQb)
a(f'buffer_load_dwordx2 v[{vT+6}:{vT+7}], v{vRo}, {XS}, {sX2b} offen')
a(f'buffer_load_dword v{vFl}, v{vFo}, {R3}, 0 offen')
perm_pair(VR, VT, 0)
perm_pair(VR, VT, 1)
a('s_waitcnt vmcnt(5)')
perm_pair(VR, VT, 2)
a('s_waitcnt vmcnt(3)')
perm_pair(VR, VT, 3)
a(f'''s_waitcnt vmcnt(0)''')
unpack4(RES, vT + 6)
a(f'''v_and_b32 v{vT}, 40, v{vL}
v_mov_b32 v{vT+1}, {hex(BIG)}
v_cmp_eq_u32 vcc, 0, v{vT}
v_cndmask_b32 v{vRo}, v{vT+1}, v{vRo}, vcc
s_mov_b32 {sIt}, 0
s_waitcnt lgkmcnt(0)
s_branch L_A_QCHK''')

a.label('L_A_LOOP')
poll(issue_q, range(P_, P_ + 4), vT, sQb, True, entry='L_A_QCHK')
stamp(4)
def bcast_q(t):
    for r in range(4):
        a(f'v_mov_b32_dpp v{Q_+4*t+r}, v{P_+r} quad_perm:[{t},{t},{t},{t}] row_mask:0xf bank_mask:0xf')
bcast_q(0)
bcast_q(1)
for t in range(4):
    for blk in range(2):
        mfma(S_ + 4*blk, K_ + 16*blk + 4*t, Q_ + 4*t, (S_ + 4*blk) if t else None)
    if t < 2:
        bcast_q(t + 2)
a(f'''v_max3_f32 v{vT}, v{S_}, v{S_+1}, v{S_+2}
v_max3_f32 v{vT+1}, v{S_+4}, v{S_+5}, v{S_+6}
v_max3_f32 v{vT}, v{vT}, v{S_+3}, v{S_+7}
v_max_f32 v{vT}, v{vT}, v{vT+1}
v_mov_b32 v{vT+1}, v{vT}
v_permlane32_swap_b32 v{vT}, v{vT+1}
v_max_f32 v{vT}, v{vT}, v{vT+1}
v_mov_b32 v{vT+1}, v{vT}
v_permlane16_swap_b32 v{vT}, v{vT+1}
v_max_f32 v{vT}, v{vT}, v{vT+1}
v_mul_f32 v{vT}, {sC1}, v{vT}
ds_write_b32 v{vMw}, v{vT}''')
for i in range(8):
    a(f'v_fma_f32 v{S_+i}, v{S_+i}, {sC1}, -v{vT}')
for i in range(8):
    a(f'v_exp_f32 v{S_+i}, v{S_+i}')
for i in range(4):
    a(f'v_cvt_pk_bf16_f32 v{P_+i}, v{S_+2*i}, v{S_+2*i+1}')
a(f'''s_waitcnt lgkmcnt(0)
s_barrier
ds_read_b128 {q(vT)}, v{vMr}
ds_read_b128 {q(vT+4)}, v{vMr} offset:16
ds_read_b32 v{vT+8}, v{vLw}''')
mfma(DL, P_, ON)
for dd in range(4):
    mfma(D_ + 4*dd, P_, VT + 4*dd)
a(f'''s_waitcnt lgkmcnt(0)
v_max3_f32 v{vM}, v{vT}, v{vT+1}, v{vT+2}
v_max3_f32 v{vT+4}, v{vT+4}, v{vT+5}, v{vT+6}''')
mfma(D_ + 16, P_, VT + 16)
a(f'''v_max3_f32 v{vM}, v{vM}, v{vT+3}, v{vT+7}
v_max_f32 v{vM}, v{vM}, v{vT+4}''')
mfma(D_ + 20, P_, VT + 20)
a(f'''v_sub_f32 v{vT+8}, v{vT+8}, v{vM}
v_exp_f32 v{vT+8}, v{vT+8}''')
mfma(D_ + 24, P_, VT + 24)
mfma(D_ + 28, P_, VT + 28)
a(f'v_mul_f32 v{vT+9}, v{DL}, v{vT+8}')
for dd in range(4):
    a(f'v_mul_f32 v{vT+dd}, v{D_+4*dd}, v{vT+8}')
a(f'''ds_write_b32 v{vLw}, v{vT+9} offset:128
ds_write_b128 v{vOw}, {q(vT)}''')
for dd in range(4, 8):
    a(f'v_mul_f32 v{vT+dd}, v{D_+4*dd}, v{vT+8}')
a(f'''ds_write_b128 v{vOw}, {q(vT+4)} offset:1024
s_waitcnt lgkmcnt(0)
s_barrier''')
stamp(5)
a(f'''s_cmp_lt_u32 {sW}, 2
s_cbranch_scc1 L_A_RED
s_cmp_lt_u32 {sW}, 4
s_cbranch_scc1 L_A_NEXT''')
a(f'''s_lshl_b32 {sT0}, {sW}, 5
s_add_u32 {sT0}, {sT0}, {hex(MB)}
v_mov_b32 v{vT}, {sT0}''')
for i in range(8):
    a(f'ds_read_b64 v[{D_+2*i}:{D_+2*i+1}], v{vCr} offset:{i*8192}')
a(f'''ds_read_b128 {q(D_+16)}, v{vT}
ds_read_b128 {q(D_+20)}, v{vT} offset:16
s_add_u32 {sT0}, {sLay}, {hex(CPY)}
s_waitcnt lgkmcnt(2)''')
def pk(d, x, y, op='add'):
    a(f'v_pk_{op}_f32 v[{d}:{d+1}], v[{x}:{x+1}], v[{y}:{y+1}]')
for i in range(4):
    pk(D_ + 4*i, D_ + 4*i, D_ + 4*i + 2)
a('s_waitcnt lgkmcnt(0)')
pk(D_ + 16, D_ + 16, D_ + 18)
pk(D_ + 20, D_ + 20, D_ + 22)
pk(D_, D_, D_ + 4)
pk(D_ + 16, D_ + 16, D_ + 20)
pk(D_ + 8, D_ + 8, D_ + 12)
a(f'v_add_f32 v{D_+16}, v{D_+16}, v{D_+17}')
pk(D_, D_, D_ + 8)
a(f'''v_rcp_f32 v{D_+17}, v{D_+16}
v_log_f32 v{D_+16}, v{D_+16}
v_mul_f32 v{D_}, v{D_}, v{D_+17}
v_mul_f32 v{D_+1}, v{D_+1}, v{D_+17}
v_add_f32 v{D_+16}, v{D_+16}, v{vM}
v_cvt_pk_bf16_f32 v{D_}, v{D_}, v{D_+1}
v_min_u32 v{D_+16}, -2, v{D_+16}
v_min_u32 v{D_}, -2, v{D_}
buffer_store_dword v{D_}, v{vPo}, {WS}, {sLay} offen
buffer_store_dword v{D_+16}, v{vPl}, {WS}, {sLay} offen
buffer_store_dword v{D_}, v{vPo}, {WS}, {sT0} offen sc1
buffer_store_dword v{D_+16}, v{vPl}, {WS}, {sT0} offen sc1''')
stamp(6)
a('s_branch L_A_NEXT')
a.label('L_A_RED')
a(f'''s_cmp_eq_u32 {sLay}, 0
s_cbranch_scc1 L_A_RED_GO
s_and_b32 {sT0}, {sJ}, 7
s_cmp_lg_u32 {sT0}, {sG}
s_cbranch_scc1 L_A_NEXT''')
a.label('L_A_RED_GO')
def resc():
    a(f'v_cmp_gt_u32 vcc, 8, v{vC}')
    for r in range(4):
        a(f'v_cndmask_b32 v{RESC+r}, 0, v{RES+r}, vcc')
def finish_red():
    for r in range(4):
        a(f'v_add_f32_dpp v{vT+r}, v{DL+r}, v{DL+r} row_ror:8 row_mask:0xf bank_mask:0xf')
    a(f'''v_cvt_pk_bf16_f32 v{vT+4}, v{vT}, v{vT+1}
    v_cvt_pk_bf16_f32 v{vT+5}, v{vT+2}, v{vT+3}''')
resc()
poll(lambda so: a(f'buffer_load_dwordx4 {q(D_)}, v{vRx}, {WS}, {so} offen sc1'), range(D_, D_ + 4), vT, sXb, False)
stamp(7)
mfma(DL, SEL, D_, RESC)
finish_red()
unpack4(RES, vT + 4)
resc()
a(f's_add_u32 {sFb2}, {sFb}, 0x1000')
def issue_fp(so):
    for i in range(7):
        a(f'buffer_load_dwordx4 {q(D_+4*i)}, v{vRf}, {WS}, {sFb if i < 4 else sFb2} offen offset:{(i&3)*1024} sc1')
poll(issue_fp, range(D_, D_ + 28), vT, sFb, False)
stamp(8)
for i in range(7):
    mfma(DL, SEL, D_ + 4*i, DL if i else RESC)
finish_red()
a(f'''s_cmp_lg_u32 {sLay}, 0
s_cbranch_scc1 L_A_OUT
s_lshl_b32 {sT0}, {sG}, 12
s_add_u32 {sT0}, {sT0}, {sX2b}
s_add_u32 {sT0}, {sT0}, {hex(X2A)}
s_add_u32 {sT1}, {sT0}, {hex(CPY)}
v_min_u32 v{vT+4}, -2, v{vT+4}
v_min_u32 v{vT+5}, -2, v{vT+5}
buffer_store_dwordx2 v[{vT+4}:{vT+5}], v{vRo}, {WS}, {sT0} offen
buffer_store_dwordx2 v[{vT+4}:{vT+5}], v{vRo}, {WS}, {sT1} offen sc1''')
stamp(9)
unpack4(RES, vT + 4)
a('s_branch L_A_NEXT')
a.label('L_A_OUT')
a(f'buffer_store_dwordx2 v[{vT+4}:{vT+5}], v{vRo}, {R3}, {sX2b} offen')
stamp(9)
a.label('L_A_NEXT')
dump_stamps(vT, vT + 1)
a(f'''s_cmp_lg_u32 {sLay}, 0
s_cbranch_scc1 L_END
s_mov_b32 {sLay}, {hex(LAY)}
s_add_u32 {sQb}, {sQb}, {hex(LAY)}
s_add_u32 {sXb}, {sXb}, {hex(LAY)}
s_add_u32 {sFb}, {sFb}, {hex(LAY)}
s_barrier''')
a.settle()
a('s_branch L_A_LOOP')

a.label('L_ROLE_B')
sI, sWq, sWo, sQo, sXo, sOo, sXp, sFo = 's64', 's65', 's66', 's67', 's68', 's69', 's71', 's72'
vDo, vZ, vTr, vLs, vAc, vSt, vRd, vRs, vQs, vRz, vGo, vFs, vFr, vFt = 4, 5, 7, 8, 9, 10, 11, 12, 13, 14, 15, 16, 17, 18
vFl = 19
WQ, W1, W2R, W2T, WO = 20, 36, 52, 84, 36
X_, ON, D0, D1, G0, G1, SL, SH, RES = 116, 124, 128, 132, 136, 140, 144, 148, 152
LD = 52
OL = 68
vT = 156
XD, CSQ, CSF = 172, 174, 176
SC = 180
LR = 0x8000
LA = 0x18000
ST_OFF, DUMP_OFF, CS_OFF = 0x1000, 0x1100, 0x1400
a(f"""s_sub_u32 {sI}, {sM}, 16
v_lshlrev_b32 v{vT}, 4, v{vL}
v_mov_b32 v{vT+4}, -1
v_mov_b32 v{vT+5}, -1
v_mov_b32 v{vT+6}, -1
v_mov_b32 v{vT+7}, -1
s_lshl_b32 {sT0}, {sI}, 3
s_add_u32 {sT0}, {sT0}, {sG}
s_mul_i32 {sT0}, {sT0}, {21 * 1024}
v_lshrrev_b32 v{vT+1}, 2, v{vL}
v_and_b32 v{vT+2}, 3, v{vL}
v_lshlrev_b32 v{vT+2}, 4, v{vT+2}
v_lshl_add_u32 v{vDo}, v{vT+1}, 13, v{vT+2}
s_lshl_b32 {sWq}, {sW}, 19
s_lshl_b32 {sT1}, {sG}, 10
s_add_u32 {sWq}, {sWq}, {sT1}
s_lshl_b32 {sT1}, {sI}, 6
s_add_u32 {sWq}, {sWq}, {sT1}
s_lshl_b32 {sT1}, {sW}, 12
s_mov_b32 m0, {sT1}
v_lshrrev_b32 v{vT+3}, 2, v{vC}
v_lshrrev_b32 v{vT+8}, 1, v{vG}
v_and_b32 v{vT+9}, 1, v{vG}
v_lshl_add_u32 v{vRz}, v{vT+8}, 6, v{vT+2}
v_lshl_add_u32 v{vRz}, v{vT+9}, 3, v{vRz}
v_lshl_add_u32 v{vRz}, v{vT+3}, 10, v{vRz}
s_lshl_b32 {sXo}, {sW}, 7
s_lshl_b32 {sPo}, {sW}, 3
s_or_b32 {sPo}, {sPo}, {sI}
s_waitcnt lgkmcnt(0)""")
stamp(10)
srd(40, 36, WSN)
a(f"""s_cmp_ge_u32 {sPo}, 8
s_cbranch_scc1 L_B_NOINIT""")
for k in range(21):
    a(f'buffer_store_dwordx4 {q(vT+4)}, v{vT}, {WS}, {sT0} offen offset:{(k&3)*1024} sc1')
    if k & 3 == 3:
        a(f's_add_u32 {sT0}, {sT0}, 0x1000')
a.label('L_B_NOINIT')
srd(48, 22, 0x400000)
srd(44, 16, 4096)
for i in range(4):
    a(f'buffer_load_dwordx4 v{vDo}, {R1}, {sWq} offen offset:{i*1024} {NT} lds')
    if i < 3:
        a(f's_add_u32 {sWq}, {sWq}, {16*8192 - 1024}')
a(f'buffer_load_dwordx2 v[{XD}:{XD+1}], v{vRz}, {XS}, {sXo} offen')
stamp(1)
srd(60, 34, 256)
if DIAG:
    srd(76, 36, 0x400000)
a(f"""v_mov_b32 v{vZ}, 0
v_mov_b32 v{vGo}, 0
s_cmp_ge_u32 {sI}, 8
s_cbranch_scc1 L_B_PRO_O
s_cmp_lg_u32 {sW}, 0
s_cbranch_scc1 L_B_PRO_DONE
v_mov_b32 v{vFl}, 1
s_mov_b64 exec, 1
s_waitcnt vmcnt(5)
buffer_atomic_add v{vFl}, v{vZ}, {DBG}, 0 offen offset:128 sc0
s_waitcnt vmcnt(0)
v_readfirstlane_b32 {sT0}, v{vFl}
s_cmp_lg_u32 {sT0}, 63
s_cbranch_scc1 L_B_NOGO
buffer_store_dword v{vFl}, v{vZ}, {DBG}, 0 offen offset:64 sc1""")
a.label('L_B_NOGO')
a("""s_mov_b64 exec, -1
s_branch L_B_PRO_DONE""")
a.label('L_B_PRO_O')
srd(52, 24, 0x400000)
a(f"""s_lshl_b32 {sWo}, {sG}, 19
s_lshr_b32 {sT0}, {sW}, 1
s_lshl_b32 {sT0}, {sT0}, 17
s_add_u32 {sWo}, {sWo}, {sT0}
s_sub_u32 {sT0}, {sI}, 8
s_lshl_b32 {sT0}, {sT0}, 7
s_add_u32 {sWo}, {sWo}, {sT0}
s_and_b32 {sT0}, {sW}, 1
s_lshl_b32 {sT0}, {sT0}, 6
s_add_u32 {sWo}, {sWo}, {sT0}
v_lshl_add_u32 v{vGo}, v{vT+1}, 10, v{vT+2}""")
def wo_dma(lo, hi):
    for i in range(lo, hi):
        if i % 4 == 0 or i == lo:
            a(f"""s_lshl_b32 {sT1}, {sW}, 13
            s_add_u32 {sT1}, {sT1}, {LR + (i//4)*4096}
            s_mov_b32 m0, {sT1}""")
        a(f"""s_add_u32 {sT0}, {sWo}, {i*16*1024 - (i&3)*1024}
        buffer_load_dwordx4 v{vGo}, {R2}, {sT0} offen offset:{(i&3)*1024} {NT} lds""")
wo_dma(0, NWO_EARLY)
a.label('L_B_PRO_DONE')
a(f"""v_lshrrev_b32 v{vTr}, 1, v{vT+2}
v_lshl_add_u32 v{vTr}, v{vT+3}, 6, v{vTr}
v_lshl_add_u32 v{vLs}, v{vG}, 9, v{vTr}
v_lshl_add_u32 v{vTr}, v{vT+9}, 8, v{vTr}
v_lshl_add_u32 v{vTr}, v{vT+8}, 11, v{vTr}
s_lshl_b32 {sT0}, {sW}, 12
v_add_u32 v{vTr}, {sT0}, v{vTr}
s_lshl_b32 {sT0}, {sW}, 9
s_add_u32 {sT0}, {sT0}, {hex(LA)}
v_lshlrev_b32 v{vAc}, 2, v{vC}
v_lshl_add_u32 v{vAc}, v{vG}, 7, v{vAc}
v_add_u32 v{vAc}, {sT0}, v{vAc}
v_lshlrev_b32 v{vRd}, 3, v{vL}
v_add_u32 v{vT+5}, {hex(LA + DUMP_OFF)}, v{vRd}
v_add_u32 v{vRd}, {hex(LA)}, v{vRd}
v_lshlrev_b32 v{vRs}, 6, v{vG}
v_add_u32 v{vRs}, {hex(LA + ST_OFF)}, v{vRs}
s_lshl_b32 {sT0}, {sW}, 3
v_add_u32 v{vT+4}, {sT0}, v{vRs}
v_lshlrev_b32 v{vT+6}, 2, v{vG}
v_cmp_eq_u32 vcc, v{vT+6}, v{vC}
v_cndmask_b32 v{vSt}, v{vT+5}, v{vT+4}, vcc
v_lshlrev_b32 v{vQs}, 2, v{vC}
v_lshl_add_u32 v{vQs}, v{vG}, 10, v{vQs}
s_lshl_b32 {sQo}, {sG}, 12
s_lshl_b32 {sT0}, {sI}, 6
s_add_u32 {sQo}, {sQo}, {sT0}
v_mov_b32 v{vFs}, {hex(BIG)}""")
for i in range(4):
    a(f'v_mov_b32 v{ON+i}, 0x3f803f80')
a(f"""s_cmp_lt_u32 {sI}, 8
s_cbranch_scc1 L_B_W0
s_waitcnt vmcnt({NWO_EARLY})
s_branch L_B_W1""")
a.label('L_B_W0')
a('s_waitcnt vmcnt(0)')
a.label('L_B_W1')
stamp(2)
def tr_tile(Wr, base):
    for t in range(2):
        for j in range(2):
            for h in range(2):
                r = Wr + 8*t + 4*j + 2*h
                a(f'ds_read_b64_tr_b16 v[{r}:{r+1}], v{vTr} offset:{base + t*1024 + h*512 + j*32}')
def read8(vaddr, off):
    for i in range(4):
        a(f'ds_read2st64_b64 {q(SC+4*i)}, v{vaddr} offset0:{off//512 + 2*i} offset1:{off//512 + 2*i+1}')
def sum8(dst, base):
    for i in range(4):
        pk(base + 4*i, base + 4*i, base + 4*i + 2)
    pk(base, base, base + 4)
    pk(base + 8, base + 8, base + 12)
    pk(dst, base, base + 8)
def colsum(Wr, vrd, dst):
    a('s_waitcnt lgkmcnt(0)')
    for j, d in ((0, D0), (1, D1)):
        mfma(d, ON, Wr + 4*j)
    for j, d in ((0, D0), (1, D1)):
        mfma(d, ON, Wr + 8 + 4*j, d)
    a(f"""ds_write_b32 v{vAc}, v{D0} offset:{CS_OFF}
    ds_write_b32 v{vAc}, v{D1} offset:{CS_OFF + 64}
    s_waitcnt lgkmcnt(0)
    s_barrier""")
    read8(vrd, CS_OFF)
    a('s_waitcnt lgkmcnt(0)')
    sum8(dst, SC)
tr_tile(WQ, 0)
colsum(WQ, vRd, CSQ)
a(f"""s_cmp_lg_u32 {sW}, 0
s_cbranch_scc1 L_B_QGO""")
flag_spin(vFl, vZ)
a('s_branch L_B_QGO')

a.label('L_B_LOOP')
poll(lambda so: a(f'buffer_load_dwordx2 v[{XD}:{XD+1}], v{vRz}, {WS}, {so} offen sc1'), [XD, XD + 1], vT, sXo, True)
a.label('L_B_QGO')
stamp(3)
def gemv32(Wr, src):
    def bc(ch):
        for r in range(2):
            a(f'v_mov_b32_dpp v{X_ + 2*ch + r}, v{src+r} quad_perm:[{ch},{ch},{ch},{ch}] row_mask:0xf bank_mask:0xf')
    for ch in range(4):
        bc(ch)
    mfma(D0, X_, Wr)
    mfma(D1, X_, Wr + 4)
    mfma(D0, X_ + 4, Wr + 8, D0)
    mfma(D1, X_ + 4, Wr + 12, D1)
    mfma(G0, X_, X_)
    mfma(G1, X_, ON)
    mfma(G0, X_ + 4, X_ + 4, G0)
    mfma(G1, X_ + 4, ON, G1)
    a(f"""ds_write2_b32 v{vAc}, v{D0}, v{D1} offset0:0 offset1:16
    ds_write2_b32 v{vSt}, v{G0}, v{G1} offset0:0 offset1:1
    s_waitcnt lgkmcnt(0)
    s_barrier""")
def ln_finish(vraw, vst, cs):
    for i in range(4):
        a(f'ds_read_b128 {q(SC+16+4*i)}, v{vst} offset:{16*i}')
    read8(vraw, 0)
    a('s_waitcnt lgkmcnt(4)')
    sum8(vT + 8, SC + 16)
    a(f"""v_mul_f32 v{vT+9}, {hex(f2u(1/512))}, v{vT+9}
    v_mul_f32 v{vT+8}, {hex(f2u(1/512))}, v{vT+8}
    v_fma_f32 v{vT+8}, -v{vT+9}, v{vT+9}, v{vT+8}
    v_max_f32 v{vT+8}, 0, v{vT+8}
    v_add_f32 v{vT+8}, {hex(f2u(1e-5))}, v{vT+8}
    v_rsq_f32 v{vT+8}, v{vT+8}
    s_waitcnt lgkmcnt(0)""")
    sum8(vT + 4, SC)
    a(f"""v_fma_f32 v{vT+4}, -v{vT+9}, v{cs}, v{vT+4}
    v_fma_f32 v{vT+5}, -v{vT+9}, v{cs+1}, v{vT+5}
    v_mul_f32 v{vT+4}, v{vT+4}, v{vT+8}
    v_mul_f32 v{vT+5}, v{vT+5}, v{vT+8}""")
gemv32(WQ, XD)
a(f"""s_cmp_lg_u32 {sW}, 0
s_cbranch_scc1 L_B_QDONE
s_add_u32 {sT0}, {sQo}, {hex(CPY)}""")
ln_finish(vRd, vRs, CSQ)
a(f"""v_cvt_pk_bf16_f32 v{vT+4}, v{vT+4}, v{vT+5}
v_min_u32 v{vT+4}, -2, v{vT+4}
buffer_store_dword v{vT+4}, v{vQs}, {WS}, {sQo} offen
buffer_store_dword v{vT+4}, v{vQs}, {WS}, {sT0} offen sc1""")
a.label('L_B_QDONE')
stamp(4)
a(f"""s_cmp_ge_u32 {sI}, 8
s_cbranch_scc1 L_B_O
s_cmp_eq_u32 {sI}, 7
s_cbranch_scc1 L_B_NEXT
s_cmp_lg_u32 {sLay}, 0
s_cbranch_scc1 L_B_F""")
srd(52, 28, 512 * 3584)
srd(56, 30, 1792 * 1024)
a(f"""s_mul_i32 {sFo}, {sG}, 7
s_add_u32 {sFo}, {sFo}, {sI}
s_mul_i32 {sT0}, {sW}, {64 * 3584}
s_lshl_b32 {sT1}, {sFo}, 6
s_add_u32 {sT0}, {sT0}, {sT1}
s_lshl_b32 {sT1}, {sW}, 12
s_add_u32 {sT1}, {sT1}, {hex(LR)}
s_mov_b32 m0, {sT1}
v_lshrrev_b32 v{vT}, 2, v{vL}
v_mul_u32_u24 v{vT}, 3584, v{vT}
v_and_b32 v{vT+1}, 3, v{vL}
v_lshl_add_u32 v{vT}, v{vT+1}, 4, v{vT}""")
for i in range(4):
    a(f'buffer_load_dwordx4 v{vT}, {R2}, {sT0} offen offset:{i*1024} {NT} lds')
    if i < 3:
        a(f's_add_u32 {sT0}, {sT0}, {16*3584 - 1024}')
a(f"""s_cmp_ge_u32 {sW}, 4
s_cbranch_scc1 L_B_NOW2
s_lshl_b32 {sT0}, {sFo}, 15
s_lshl_b32 {sT1}, {sW}, 8
s_add_u32 {sT0}, {sT0}, {sT1}
s_add_u32 {sT1}, {sT0}, 0x1000
v_lshlrev_b32 v{vT}, 4, v{vC}
v_lshl_add_u32 v{vT}, v{vG}, 13, v{vT}""")
for i in range(8):
    a(f'buffer_load_dwordx4 {q(W2R+4*i)}, v{vT}, {R3}, {sT0 if i < 4 else sT1} offen offset:{(i&3)*1024} {NT}')
a.label('L_B_NOW2')
a(f"""v_lshrrev_b32 v{vT+4}, 2, v{vC}
v_and_b32 v{vT+5}, 3, v{vC}
v_lshlrev_b32 v{vGo}, 4, v{vT+5}
v_lshl_add_u32 v{vGo}, v{vT+4}, 7, v{vGo}
v_lshl_add_u32 v{vGo}, v{vG}, 9, v{vGo}
s_lshl_b32 {sXp}, {sW}, 12
s_add_u32 {sXp}, {sXp}, {hex(XP)}
v_lshlrev_b32 v{vFr}, 3, v{vT+5}
v_lshl_add_u32 v{vFr}, v{vG}, 5, v{vFr}
v_lshl_add_u32 v{vFr}, v{vT+4}, 7, v{vFr}
v_add_u32 v{vFr}, {hex(LA)}, v{vFr}
v_lshlrev_b32 v{vFt}, 6, v{vT+4}
v_add_u32 v{vFt}, {hex(LA + ST_OFF)}, v{vFt}
v_lshrrev_b32 v{vT+4}, 3, v{vC}
v_lshl_add_u32 v{vT+4}, v{vG}, 3, v{vT+4}
v_mul_u32_u24 v{vFs}, 7168, v{vT+4}
v_and_b32 v{vT+4}, 7, v{vC}
v_lshl_add_u32 v{vFs}, v{vT+4}, 4, v{vFs}
s_lshl_b32 {sFo}, {sFo}, 7
s_mul_i32 {sT0}, {sW}, {2 * 7168}
s_add_u32 {sFo}, {sFo}, {sT0}
s_add_u32 {sFo}, {sFo}, {hex(FP)}
v_xor_b32 v{vT+4}, 8, v{vC}""")
selector(SL, vC, vT + 8)
selector(SH, vT + 4, vT + 8)
a('s_waitcnt vmcnt(0)')
tr_tile(W1, LR)
for i in range(4):
    perm_pair(W2R, W2T, i)
colsum(W1, vFr, CSF)
a.label('L_B_F')
unpack4(RES, XD)
stamp(5)
def issue_xp(so):
    for hf in range(2):
        for pg in range(2):
            a(f'buffer_load_dwordx4 {q(LD + 8*hf + 4*pg)}, v{vGo}, {WS}, {so} offen offset:{pg*2048 + hf*64} sc1')
poll(issue_xp, range(LD, LD + 16), vT, sXp, False)
stamp(6)
mfma(D0, SL, LD, RES)
mfma(D0, SL, LD + 4, D0)
mfma(D0, SH, LD + 8, D0)
mfma(D0, SH, LD + 12, D0)
a(f"""v_cvt_pk_bf16_f32 v{vT}, v{D0}, v{D0+1}
v_cvt_pk_bf16_f32 v{vT+1}, v{D0+2}, v{D0+3}""")
gemv32(W1, vT)
stamp(7)
a(f"""s_cmp_ge_u32 {sW}, 4
s_cbranch_scc1 L_B_NEXT""")
ln_finish(vFr, vFt, CSF)
a(f"""v_mul_f32 v{vT+6}, {hex(f2u(-1.4426950408889634))}, v{vT+4}
v_mul_f32 v{vT+7}, {hex(f2u(-1.4426950408889634))}, v{vT+5}
v_exp_f32 v{vT+6}, v{vT+6}
v_exp_f32 v{vT+7}, v{vT+7}
v_add_f32 v{vT+6}, 1.0, v{vT+6}
v_add_f32 v{vT+7}, 1.0, v{vT+7}
v_rcp_f32 v{vT+6}, v{vT+6}
v_rcp_f32 v{vT+7}, v{vT+7}
v_mul_f32 v{vT+4}, v{vT+4}, v{vT+6}
v_mul_f32 v{vT+5}, v{vT+5}, v{vT+7}
v_cvt_pk_bf16_f32 v{vT+4}, v{vT+4}, v{vT+5}""")
for ch in range(4):
    a(f'v_mov_b32_dpp v{X_ + ch}, v{vT+4} quad_perm:[{ch},{ch},{ch},{ch}] row_mask:0xf bank_mask:0xf')
for j in range(8):
    mfma(LD + 4*j, X_, W2T + 4*j)
for i in range(4):
    a(f'v_cvt_pk_bf16_f32 v{vT+i}, v{LD+8*i}, v{LD+8*i+4}')
for i in range(4):
    a(f'v_min_u32 v{vT+i}, -2, v{vT+i}')
a(f'buffer_store_dwordx4 {q(vT)}, v{vFs}, {WS}, {sFo} offen sc1')
stamp(8)
a('s_branch L_B_NEXT')
a.label('L_B_O')
a(f"""s_cmp_lg_u32 {sLay}, 0
s_cbranch_scc1 L_B_OGO""")
wo_dma(NWO_EARLY, 8)
a(f"""s_lshl_b32 {sT0}, {sW}, 13
s_add_u32 {sT0}, {sT0}, {hex(LR)}
v_add_u32 v{vT+7}, {sT0}, v{vLs}
s_lshl_b32 {sOo}, {sG}, 14
s_lshr_b32 {sT0}, {sW}, 1
s_lshl_b32 {sT1}, {sT0}, 12
s_add_u32 {sOo}, {sOo}, {sT1}
s_add_u32 {sOo}, {sOo}, {hex(OA)}
v_lshlrev_b32 v{vGo}, 4, v{vL}
v_add_u32 v{vFr}, {hex(LA)}, v{vGo}
v_add_u32 v{vGo}, {sOo}, v{vGo}
s_lshl_b32 {sOo}, {sG}, 8
s_lshl_b32 {sT1}, {sT0}, 6
s_add_u32 {sOo}, {sOo}, {sT1}
s_add_u32 {sOo}, {sOo}, {hex(LSEA)}
v_lshlrev_b32 v{vLs}, 4, v{vG}
v_add_u32 v{vLs}, {sOo}, v{vLs}
s_lshl_b32 {sT1}, {sT0}, 10
s_and_b32 {sT0}, {sW}, 1
s_lshl_b32 {sT0}, {sT0}, 7
s_add_u32 {sT0}, {sT0}, {sT1}
s_add_u32 {sT0}, {sT0}, {hex(LA)}
v_lshlrev_b32 v{vFt}, 2, v{vC}
v_lshl_add_u32 v{vFt}, v{vG}, 8, v{vFt}
v_add_u32 v{vFt}, {sT0}, v{vFt}
v_lshlrev_b32 v{vFs}, 3, v{vL}
v_mov_b32 v{vT}, {hex(BIG)}
v_and_b32 v{vT+1}, 1, v{vL}
v_cmp_eq_u32 vcc, 0, v{vT+1}
v_cndmask_b32 v{vFs}, v{vT}, v{vFs}, vcc
s_sub_u32 {sFo}, {sI}, 8
s_lshl_b32 {sFo}, {sFo}, 12
s_lshl_b32 {sT0}, {sG}, 9
s_add_u32 {sFo}, {sFo}, {sT0}
s_add_u32 {sFo}, {sFo}, {hex(XP)}
s_waitcnt vmcnt(0)""")
for t in range(4):
    for j in range(2):
        for h in range(2):
            r = WO + 8*t + 4*j + 2*h
            a(f'ds_read_b64_tr_b16 v[{r}:{r+1}], v{vT+7} offset:{t*2048 + h*256 + j*32}')
a('s_waitcnt lgkmcnt(0)')
a.label('L_B_OGO')
stamp(5)
E, EW = OL + 16, OL + 20
poll(lambda so: a(f'buffer_load_dwordx4 {q(E)}, v{vLs}, {WS}, {so} offen sc1'), range(E, E + 4), vT, sLay, True)
stamp(9)
def issue_o(so):
    for t in range(4):
        a(f'buffer_load_dwordx4 {q(OL+4*t)}, v{vGo}, {WS}, {so} offen offset:{t*1024} sc1')
    a(f"""v_max3_f32 v{vT}, v{E}, v{E+1}, v{E+2}
    v_max_f32 v{vT}, v{vT}, v{E+3}""")
    for s_ in range(4):
        a(f'v_sub_f32 v{EW+s_}, v{E+s_}, v{vT}')
    for s_ in range(4):
        a(f'v_exp_f32 v{EW+s_}, v{EW+s_}')
    a(f"""v_add_f32 v{vT}, v{EW}, v{EW+1}
    v_add_f32 v{vT+1}, v{EW+2}, v{EW+3}
    v_add_f32 v{vT}, v{vT}, v{vT+1}
    v_rcp_f32 v{vT}, v{vT}""")
    for s_ in range(4):
        a(f'v_mul_f32 v{EW+s_}, v{EW+s_}, v{vT}')
poll(issue_o, range(OL, OL + 16), vT, sLay, True)
stamp(6)
for t in range(4):
    mfma(D0, OL + 4*t, WO + 8*t, D0 if t else None)
    mfma(D1, OL + 4*t, WO + 8*t + 4, D1 if t else None)
a(f'v_mul_f32 v{vT}, v{D0}, v{EW}')
for s_ in range(1, 4):
    a(f'v_fmac_f32 v{vT}, v{D0+s_}, v{EW+s_}')
a(f'v_mul_f32 v{vT+1}, v{D1}, v{EW}')
for s_ in range(1, 4):
    a(f'v_fmac_f32 v{vT+1}, v{D1+s_}, v{EW+s_}')
a(f"""ds_write2_b32 v{vFt}, v{vT}, v{vT+1} offset0:0 offset1:16
s_waitcnt lgkmcnt(0)
s_barrier""")
stamp(7)
a(f"""s_cmp_lg_u32 {sW}, 0
s_cbranch_scc1 L_B_NEXT""")
for i in range(4):
    a(f'ds_read_b128 {q(SC+4*i)}, v{vFr} offset:{1024*i}')
a('s_waitcnt lgkmcnt(2)')
pk(SC, SC, SC + 4)
pk(SC + 2, SC + 2, SC + 6)
a('s_waitcnt lgkmcnt(0)')
pk(SC + 8, SC + 8, SC + 12)
pk(SC + 10, SC + 10, SC + 14)
pk(SC, SC, SC + 8)
pk(SC + 2, SC + 2, SC + 10)
a(f"""v_cvt_pk_bf16_f32 v{vT}, v{SC}, v{SC+1}
v_cvt_pk_bf16_f32 v{vT+1}, v{SC+2}, v{SC+3}
v_min_u32 v{vT}, -2, v{vT}
v_min_u32 v{vT+1}, -2, v{vT+1}
v_mov_b32_dpp v{vT+2}, v{vT} quad_perm:[1,1,3,3] row_mask:0xf bank_mask:0xf
v_mov_b32_dpp v{vT+3}, v{vT+1} quad_perm:[1,1,3,3] row_mask:0xf bank_mask:0xf
buffer_store_dwordx4 {q(vT)}, v{vFs}, {WS}, {sFo} offen sc1""")
stamp(8)
a.label('L_B_NEXT')
dump_stamps(vT + 12, vT + 13)
a(f"""s_cmp_lg_u32 {sLay}, 0
s_cbranch_scc1 L_END
s_mov_b32 {sLay}, {hex(LAY)}
s_add_u32 {sQo}, {sQo}, {hex(LAY)}
s_add_u32 {sXp}, {sXp}, {hex(LAY)}
s_add_u32 {sFo}, {sFo}, {hex(LAY)}
s_lshl_b32 {sT0}, {sG}, 12
s_add_u32 {sXo}, {sXo}, {sT0}
s_add_u32 {sXo}, {sXo}, {hex(X2A)}""")
a.settle()
a('s_branch L_B_LOOP')
a.label('L_END')
a('s_endpgm')

ref = open('cdna_kernels/' + NAME + '.s.ref').read().split('\n')
head = [l for l in ref if l.startswith(';') and '@launch' not in l]
LDS = 0x1A400
nv = max(a.maxv + 1, 136)
out = '\n'.join(head) + f'''
; @launch grid=(256,1,1) block=(512,1,1) lds={LDS}
.amdgcn_target "amdgcn-amd-amdhsa--gfx950"
.text
.globl {NAME}_kernel
.p2align 8
.type {NAME}_kernel,@function
{NAME}_kernel:
''' + a.text() + f'''.section .rodata,"a"
.p2align 6
.amdhsa_kernel {NAME}_kernel
  .amdhsa_next_free_vgpr {nv}
  .amdhsa_next_free_sgpr 102
  .amdhsa_accum_offset {(nv + 3) // 4 * 4}
  .amdhsa_group_segment_fixed_size 0
  .amdhsa_kernarg_size 88
  .amdhsa_user_sgpr_count 2
  .amdhsa_user_sgpr_kernarg_segment_ptr 1
  .amdhsa_system_sgpr_workgroup_id_x 1
  .amdhsa_float_denorm_mode_32 3
.end_amdhsa_kernel
'''
dst = [x for x in sys.argv[1:] if not x.startswith('--')]
open(dst[0] if dst else 'cdna_kernels/' + NAME + '.s', 'w').write(out)
print('vgprs', nv, 'sgpr max', a.maxs, 'lines', len(a.lines), file=sys.stderr)
```

```python
import sys, struct
from asmlib import Asm

NAME = 'interleave_layers__sliding_block_cached__dense_activation_silu__decode'
DIAG = '--diag' in sys.argv
def opt(name, default):
    for a in sys.argv:
        if a.startswith(f'--{name}='):
            return int(a.split('=')[1], 0)
    return default
NWO_EARLY = opt('nwo', 4)
NT = 'nt' if opt('nt', 1) else ''
NTW = 'nt' if opt('ntw', 1) else ''
XK = opt('xk', 0)

def f2u(x):
    return struct.unpack('<I', struct.pack('<f', x))[0]

QA, OA, LSEA, X2A, CPY = 0x00000, 0x08000, 0x28000, 0x29000, 0x31000
XP, FP, LAY = 0x62000, 0x6A000, 0xA2000
WSN = 2 * LAY
STAMP_BASE = 0x200000
BIG = 0x40000000
LIMIT = 0x200000
sG, sM, sW, sLay, sIt, sT0, sT1, sPo = 's3', 's4', 's5', 's6', 's7', 's8', 's9', 's10'
WS, XS, R1, R2, R3, DBG = 's[40:43]', 's[44:47]', 's[48:51]', 's[52:55]', 's[56:59]', 's[60:63]'
STS = 's[76:79]'
sPermLo, sPermHi = 's38', 's39'

a = Asm()
vL, vC, vG = 1, 2, 3

def srd(n, lo, size):
    a(f'''s_mov_b32 s{n}, s{lo}
    s_mov_b32 s{n+1}, s{lo+1}
    s_mov_b32 s{n+2}, {hex(size)}
    s_mov_b32 s{n+3}, 0x20000''')

def q(n, k=4):
    return f'v[{n}:{n+k-1}]'

def mfma(d, x, y, c=None):
    a(f'v_mfma_f32_16x16x32_bf16 {q(d)}, {q(x)}, {q(y)}, {q(c) if c is not None else 0}')

NSTAMP = 11
def stamp(k):
    if DIAG:
        a(f'{"s_memtime" if opt("cyc", 0) else "s_memrealtime"} s[{80+2*k}:{81+2*k}]')

def fine(k):
    if opt('fine', 0):
        stamp(k)
VST = 220
def dump_stamps(vt, vz):
    if not DIAG:
        return
    l1 = a.newlabel('DS')
    l2 = a.newlabel('DS')
    a(f"""s_waitcnt lgkmcnt(0)
    s_cmp_lg_u32 {sLay}, 0
    s_cbranch_scc1 {l1}""")
    for k in range(NSTAMP):
        a(f"""v_writelane_b32 v{VST}, s{80+2*k}, {k}
        s_mov_b32 s{80+2*k}, 0""")
    a(f's_branch {l2}')
    a.label(l1)
    for k in range(NSTAMP):
        a(f'v_writelane_b32 v{VST}, s{80+2*k}, {16+k}')
    a(f"""s_lshl_b32 {sT0}, s2, 3
    s_add_u32 {sT0}, {sT0}, {sW}
    s_lshl_b32 {sT0}, {sT0}, 7
    s_add_u32 {sT0}, {sT0}, {hex(STAMP_BASE)}
    v_lshlrev_b32 v{vz}, 2, v{vL}
    s_sleep 127
    s_sleep 127
    s_mov_b32 exec_hi, 0
    buffer_store_dword v{VST}, v{vz}, {STS}, {sT0} offen
    s_mov_b64 exec, -1""")
    a.label(l2)

def check(rs, vt):
    rs = list(rs)
    if len(rs) == 1:
        a(f'v_cmp_eq_u32 vcc, -1, v{rs[0]}')
        return
    if len(rs) == 2:
        a(f'v_max_u32 v{vt}, v{rs[0]}, v{rs[1]}')
    else:
        if len(rs) >= 8:
            h = len(rs) // 2
            ra, rb = rs[:h], rs[h:]
            seqs = []
            for rr, t in ((ra, vt), (rb, vt + 1)):
                s = [f'v_max3_u32 v{t}, v{rr[0]}, v{rr[1]}, v{rr[2]}']
                rr = rr[3:]
                while len(rr) >= 2:
                    s.append(f'v_max3_u32 v{t}, v{t}, v{rr[0]}, v{rr[1]}')
                    rr = rr[2:]
                seqs.append((s, rr))
            (s0, r0), (s1, r1) = seqs
            for i in range(max(len(s0), len(s1))):
                if i < len(s0): a(s0[i])
                if i < len(s1): a(s1[i])
            left = r0 + r1
            if len(left) == 2:
                a(f'v_max3_u32 v{vt}, v{vt}, v{left[0]}, v{left[1]}')
                a(f'v_max_u32 v{vt}, v{vt}, v{vt+1}')
            elif len(left) == 1:
                a(f'v_max3_u32 v{vt}, v{vt}, v{vt+1}, v{left[0]}')
            else:
                a(f'v_max_u32 v{vt}, v{vt}, v{vt+1}')
        else:
            a(f'v_max3_u32 v{vt}, v{rs[0]}, v{rs[1]}, v{rs[2]}')
            rs = rs[3:]
            while len(rs) >= 2:
                a(f'v_max3_u32 v{vt}, v{vt}, v{rs[0]}, v{rs[1]}')
                rs = rs[2:]
            if rs:
                a(f'v_max_u32 v{vt}, v{vt}, v{rs[0]}')
    a(f'v_cmp_eq_u32 vcc, -1, v{vt}')

def poll(issue, rs, vt, sbase, dual, entry=None):
    top = a.newlabel('POLL')
    a(f's_mov_b32 {sIt}, 0')
    if dual:
        a(f's_mov_b32 {sPo}, {sbase}')
    a.label(top)
    issue(sPo if dual else sbase)
    if entry:
        a.label(entry)
    a(f's_add_u32 {sIt}, {sIt}, 1')
    if dual:
        a(f'''s_and_b32 {sT0}, {sIt}, 255
        s_cmp_eq_u32 {sT0}, 255
        s_cselect_b32 {sT0}, {hex(CPY)}, 0
        s_add_u32 {sPo}, {sbase}, {sT0}''')
    a(f'''s_cmp_gt_u32 {sIt}, {hex(LIMIT)}
    s_cbranch_scc1 L_END
    s_waitcnt vmcnt(0)''')
    check(rs, vt)
    a(f's_cbranch_vccnz {top}')

def flag_spin(vf, voff):
    top = a.newlabel('FLAG')
    a(f's_mov_b32 {sIt}, 0')
    a.label(top)
    a(f'''s_sleep 1
    buffer_load_dword v{vf}, v{voff}, {DBG}, 0 offen offset:64 sc1
    s_add_u32 {sIt}, {sIt}, 1
    s_cmp_gt_u32 {sIt}, {hex(LIMIT)}
    s_cbranch_scc1 L_END
    s_waitcnt vmcnt(0)
    v_cmp_eq_u32 vcc, 0, v{vf}
    s_cbranch_vccnz {top}''')

def perm_pair(raw, dst, i):
    for c in range(4):
        r0, r1 = raw + 8 * i + c, raw + 8 * i + 4 + c
        a(f'v_perm_b32 v{dst + 8*c + i}, v{r1}, v{r0}, {sPermLo}')
        a(f'v_perm_b32 v{dst + 8*c + 4 + i}, v{r1}, v{r0}, {sPermHi}')

def unpack4(dst, src):
    a(f'''v_lshlrev_b32 v{dst}, 16, v{src}
    v_and_b32 v{dst+1}, 0xffff0000, v{src}
    v_lshlrev_b32 v{dst+2}, 16, v{src+1}
    v_and_b32 v{dst+3}, 0xffff0000, v{src+1}''')

def selector(dst, vidx, vt):
    a(f'''v_and_b32 v{vt}, 1, v{vidx}
    v_lshlrev_b32 v{vt}, 4, v{vt}
    v_mov_b32 v{vt+1}, 0x3f80
    v_lshlrev_b32 v{vt}, v{vt}, v{vt+1}
    v_lshrrev_b32 v{vt+1}, 1, v{vidx}''')
    for i in range(4):
        a(f'''v_cmp_eq_u32 vcc, {i}, v{vt+1}
        v_cndmask_b32 v{dst+i}, 0, v{vt}, vcc''')

a(f'''s_cmp_ge_u32 s2, 0x100
s_cbranch_scc1 L_END
s_load_dwordx16 s[16:31], s[0:1], 0
s_load_dwordx4 s[32:35], s[0:1], 64
s_load_dwordx2 s[36:37], s[0:1], 80''')
if DIAG:
    for k in range(1, NSTAMP):
        a(f's_mov_b32 s{80+2*k}, 0')
    a(f'v_mov_b32 v{VST}, 0')
stamp(0)
a(f'''v_lshrrev_b32 v4, 6, v0
v_and_b32 v{vL}, 63, v0
s_and_b32 {sG}, s2, 7
v_readfirstlane_b32 {sW}, v4
s_lshr_b32 {sM}, s2, 3
v_and_b32 v{vC}, 15, v0
v_bfe_u32 v{vG}, v0, 4, 2
s_mov_b32 {sLay}, 0
s_mov_b32 {sPermLo}, 0x05040100
s_mov_b32 {sPermHi}, 0x07060302
s_cmp_ge_u32 {sM}, 16
s_cbranch_scc1 L_ROLE_B''')

vKo, vVo, vFo, vKr = 4, 5, 6, 7
vQo, vOw, vMw, vMr, vLw = 11, 12, 13, 14, 15
K_, VR, VT, Q_, S_, P_, DL, ON = 16, 48, 80, 112, 128, 136, 140, 144
D_ = VR
vT = 148
vCr, vPo, vPl, vRx, vRf, vRo, vM = 164, 165, 166, 167, 168, 169, 170
SEL, RES, RESC = 172, 176, 180
vFl = 171
sKV, sKV2, sQb, sOb, sXb, sFb, sFb2, sX2b, sC1, sJ = 's64', 's65', 's66', 's67', 's68', 's69', 's70', 's71', 's72', 's73'
MB = 0x10000
a(f'''s_lshr_b32 {sT0}, {sM}, 2
s_lshl_b32 {sT0}, {sT0}, 3
s_add_u32 {sT0}, {sT0}, {sG}
s_lshl_b32 {sKV}, {sT0}, 20
s_and_b32 {sT0}, {sM}, 3
s_lshl_b32 {sT0}, {sT0}, 16
s_add_u32 {sKV}, {sKV}, {sT0}
s_lshl_b32 {sT1}, {sW}, 13
s_add_u32 {sKV}, {sKV}, {sT1}
s_add_u32 {sKV}, {sKV}, 0xC0000
s_add_u32 {sKV2}, {sKV}, 0x1000
v_xor_b32 v{vKo}, v{vG}, v{vC}
v_lshlrev_b32 v{vKo}, 4, v{vKo}
v_lshl_add_u32 v{vKo}, v{vG}, 8, v{vKo}
v_lshlrev_b32 v{vVo}, 4, v{vC}
v_lshl_add_u32 v{vVo}, v{vG}, 10, v{vVo}
s_mov_b32 m0, {sT1}
s_waitcnt lgkmcnt(0)''')
stamp(10)
srd(48, 18, 0 if XK & 1 else 0x2000000)
for i in range(4):
    a(f'buffer_load_dwordx4 v{vKo}, {R1}, {sKV} offen offset:{i*1024} {NT} lds')
a(f's_add_u32 {sT1}, {sT1}, 0x1000\ns_mov_b32 m0, {sT1}')
srd(52, 20, 0 if XK & 1 else 0x2000000)
for i in range(4):
    a(f'buffer_load_dwordx4 v{vKo}, {R1}, {sKV2} offen offset:{i*1024} {NT} lds')
for j in range(4):
    a(f'buffer_load_dwordx4 {q(VR+4*j)}, v{vVo}, {R2}, {sKV} offen offset:{j*256} {NT}')
srd(60, 34, 256)
a(f'''v_mov_b32 v{vFo}, 0
buffer_load_dword v{vFl}, v{vFo}, {DBG}, 0 offen offset:64 sc1''')
for j in range(4):
    a(f'buffer_load_dwordx4 {q(VR+16+4*j)}, v{vVo}, {R2}, {sKV2} offen offset:{j*256} {NT}')
stamp(1)
srd(40, 36, WSN)
srd(44, 16, 4096)
srd(56, 32, 4096)
if DIAG:
    srd(76, 36, 0x400000)
a(f'''s_lshl_b32 {sT1}, {sW}, 13
v_and_b32 v{vT}, 3, v{vC}
v_lshlrev_b32 v{vT}, 4, v{vT}
v_lshl_add_u32 v{vQo}, v{vG}, 6, v{vT}
v_lshl_add_u32 v{vT}, v{vC}, 8, v{vQo}
v_add_u32 v{vKr}, {sT1}, v{vT}
v_xor_b32 v{vKr+1}, 16, v{vKr}
v_xor_b32 v{vKr+2}, 32, v{vKr}
v_xor_b32 v{vKr+3}, 48, v{vKr}
v_lshrrev_b32 v{vT}, 2, v{vC}
v_lshl_add_u32 v{vQo}, v{vT}, 8, v{vQo}
v_lshlrev_b32 v{vOw}, 4, v{vL}
v_add_u32 v{vOw}, {sT1}, v{vOw}
s_lshl_b32 {sT0}, {sW}, 2
s_add_u32 {sT0}, {sT0}, {hex(MB)}
v_lshlrev_b32 v{vMw}, 5, v{vT}
v_add_u32 v{vMw}, {sT0}, v{vMw}
v_lshlrev_b32 v{vMr}, 5, v{vG}
v_add_u32 v{vLw}, {sT0}, v{vMr}
v_add_u32 v{vMr}, {hex(MB)}, v{vMr}
s_mov_b32 {sC1}, {hex(f2u(1.4426950408889634 * 128 ** -0.5))}
s_lshl_b32 {sQb}, {sG}, 12
s_lshr_b32 {sT0}, {sM}, 2
s_lshl_b32 {sT0}, {sT0}, 10
s_add_u32 {sQb}, {sQb}, {sT0}''')
for i in range(4):
    a(f'v_mov_b32 v{ON+i}, 0x3f803f80')
a(f'''s_and_b32 {sT0}, {sW}, 3
v_lshrrev_b32 v{vT}, 2, v{vL}
v_lshlrev_b32 v{vCr}, 4, v{vT}
v_bfe_u32 v{vT}, v{vL}, 1, 1
v_lshl_add_u32 v{vCr}, v{vT}, 10, v{vCr}
v_and_b32 v{vT}, 1, v{vL}
v_lshl_add_u32 v{vCr}, v{vT}, 3, v{vCr}
s_lshl_b32 {sT1}, {sT0}, 8
v_add_u32 v{vCr}, {sT1}, v{vCr}
v_lshrrev_b32 v{vT}, 2, v{vL}
v_lshlrev_b32 v{vPo}, 8, v{vT}
v_and_b32 v{vT}, 3, v{vL}
v_lshl_add_u32 v{vPo}, v{vT}, 2, v{vPo}
s_lshl_b32 {sOb}, {sG}, 14
s_lshl_b32 {sT1}, {sT0}, 12
s_add_u32 {sOb}, {sOb}, {sT1}
s_lshl_b32 {sT1}, {sM}, 4
s_add_u32 {sOb}, {sOb}, {sT1}
s_add_u32 {sOb}, {sOb}, {hex(OA)}
v_add_u32 v{vPo}, {sOb}, v{vPo}
s_lshl_b32 {sOb}, {sG}, 8
s_lshl_b32 {sT1}, {sT0}, 6
s_add_u32 {sOb}, {sOb}, {sT1}
s_lshl_b32 {sT1}, {sM}, 2
s_add_u32 {sOb}, {sOb}, {sT1}
s_add_u32 {sOb}, {sOb}, {hex(LSEA)}
s_lshl_b32 {sT0}, {sT0}, 4
v_mov_b32 v{vPl}, {sOb}
v_mov_b32 v{vT}, {hex(BIG)}
v_cmp_eq_u32 vcc, {sT0}, v{vL}
v_cndmask_b32 v{vPl}, v{vT}, v{vPl}, vcc''')
a(f'''s_lshl_b32 {sJ}, {sM}, 1
s_and_b32 {sT0}, {sW}, 1
s_add_u32 {sJ}, {sJ}, {sT0}
s_and_b32 {sT0}, {sJ}, 7
s_lshl_b32 {sXb}, {sT0}, 12
s_lshr_b32 {sT1}, {sJ}, 3
s_lshl_b32 {sT1}, {sT1}, 7
s_add_u32 {sXb}, {sXb}, {sT1}
s_add_u32 {sXb}, {sXb}, {hex(XP)}
s_mul_i32 {sFb}, {sJ}, 7168
s_add_u32 {sFb}, {sFb}, {hex(FP)}
s_lshl_b32 {sX2b}, {sJ}, 7
v_lshrrev_b32 v{vT}, 3, v{vL}
v_lshlrev_b32 v{vRx}, 9, v{vT}
v_and_b32 v{vT}, 7, v{vL}
v_lshl_add_u32 v{vRx}, v{vT}, 4, v{vRx}
v_lshlrev_b32 v{vRf}, 4, v{vL}
v_lshlrev_b32 v{vRo}, 4, v{vT}
v_and_b32 v{vT+1}, 1, v{vG}
v_lshl_add_u32 v{vRo}, v{vT+1}, 3, v{vRo}''')
selector(SEL, vT, vT + 2)
a('s_waitcnt vmcnt(9)')
stamp(2)
for blk in range(2):
    for t in range(4):
        a(f'ds_read_b128 {q(K_ + 16*blk + 4*t)}, v{vKr+t} offset:{blk*4096}')
a(f'''s_waitcnt vmcnt(4)
v_cmp_eq_u32 vcc, 0, v{vFl}
s_cbranch_vccz L_A_FLAG_OK''')
flag_spin(vFl, vFo)
a.label('L_A_FLAG_OK')
stamp(3)
def issue_q(so):
    a(f'buffer_load_dwordx4 {q(P_)}, v{vQo}, {WS}, {so} offen sc1')
issue_q(sQb)
a(f'buffer_load_dwordx2 v[{vT+6}:{vT+7}], v{vRo}, {XS}, {sX2b} offen')
a(f'buffer_load_dword v{vFl}, v{vFo}, {R3}, 0 offen')
perm_pair(VR, VT, 0)
perm_pair(VR, VT, 1)
a('s_waitcnt vmcnt(5)')
perm_pair(VR, VT, 2)
a('s_waitcnt vmcnt(3)')
perm_pair(VR, VT, 3)
a(f'''s_waitcnt vmcnt(0)''')
unpack4(RES, vT + 6)
a(f'''v_and_b32 v{vT}, 40, v{vL}
v_mov_b32 v{vT+1}, {hex(BIG)}
v_cmp_eq_u32 vcc, 0, v{vT}
v_cndmask_b32 v{vRo}, v{vT+1}, v{vRo}, vcc
s_mov_b32 {sIt}, 0
s_waitcnt lgkmcnt(0)
s_branch L_A_QCHK''')

a.label('L_A_LOOP')
poll(issue_q, range(P_, P_ + 4), vT, sQb, True, entry='L_A_QCHK')
stamp(4)
def bcast_q(t):
    for r in range(4):
        a(f'v_mov_b32_dpp v{Q_+4*t+r}, v{P_+r} quad_perm:[{t},{t},{t},{t}] row_mask:0xf bank_mask:0xf')
bcast_q(0)
bcast_q(1)
for t in range(4):
    for blk in range(2):
        mfma(S_ + 4*blk, K_ + 16*blk + 4*t, Q_ + 4*t, (S_ + 4*blk) if t else None)
    if t < 2:
        bcast_q(t + 2)
fine(10)
a(f'''v_max3_f32 v{vT}, v{S_}, v{S_+1}, v{S_+2}
v_max3_f32 v{vT+1}, v{S_+4}, v{S_+5}, v{S_+6}
v_max3_f32 v{vT}, v{vT}, v{S_+3}, v{S_+7}
v_max_f32 v{vT}, v{vT}, v{vT+1}
v_mov_b32 v{vT+1}, v{vT}
v_permlane32_swap_b32 v{vT}, v{vT+1}
v_max_f32 v{vT}, v{vT}, v{vT+1}
v_mov_b32 v{vT+1}, v{vT}
v_permlane16_swap_b32 v{vT}, v{vT+1}
v_max_f32 v{vT}, v{vT}, v{vT+1}
v_mul_f32 v{vT}, {sC1}, v{vT}
ds_write_b32 v{vMw}, v{vT}''')
fine(1)
for i in range(8):
    a(f'v_fma_f32 v{S_+i}, v{S_+i}, {sC1}, -v{vT}')
for i in range(8):
    a(f'v_exp_f32 v{S_+i}, v{S_+i}')
for i in range(4):
    a(f'v_cvt_pk_bf16_f32 v{P_+i}, v{S_+2*i}, v{S_+2*i+1}')
fine(2)
a(f'''s_waitcnt lgkmcnt(0)
s_barrier''')
fine(3)
a(f'''ds_read_b128 {q(vT)}, v{vMr}
ds_read_b128 {q(vT+4)}, v{vMr} offset:16
ds_read_b32 v{vT+8}, v{vLw}''')
mfma(DL, P_, ON)
for dd in range(4):
    mfma(D_ + 4*dd, P_, VT + 4*dd)
a(f'''s_waitcnt lgkmcnt(0)
v_max3_f32 v{vM}, v{vT}, v{vT+1}, v{vT+2}
v_max3_f32 v{vT+4}, v{vT+4}, v{vT+5}, v{vT+6}''')
mfma(D_ + 16, P_, VT + 16)
a(f'''v_max3_f32 v{vM}, v{vM}, v{vT+3}, v{vT+7}
v_max_f32 v{vM}, v{vM}, v{vT+4}''')
mfma(D_ + 20, P_, VT + 20)
a(f'''v_sub_f32 v{vT+8}, v{vT+8}, v{vM}
v_exp_f32 v{vT+8}, v{vT+8}''')
mfma(D_ + 24, P_, VT + 24)
mfma(D_ + 28, P_, VT + 28)
fine(0)
a(f'v_mul_f32 v{vT+9}, v{DL}, v{vT+8}')
for dd in range(4):
    a(f'v_mul_f32 v{vT+dd}, v{D_+4*dd}, v{vT+8}')
a(f'''ds_write_b32 v{vLw}, v{vT+9} offset:128
ds_write_b128 v{vOw}, {q(vT)}''')
for dd in range(4, 8):
    a(f'v_mul_f32 v{vT+dd}, v{D_+4*dd}, v{vT+8}')
a(f'''ds_write_b128 v{vOw}, {q(vT+4)} offset:1024
s_waitcnt lgkmcnt(0)
s_barrier''')
stamp(5)
a(f'''s_cmp_lt_u32 {sW}, 2
s_cbranch_scc1 L_A_RED
s_cmp_lt_u32 {sW}, 4
s_cbranch_scc1 L_A_NEXT''')
a(f'''s_lshl_b32 {sT0}, {sW}, 5
s_add_u32 {sT0}, {sT0}, {hex(MB)}
v_mov_b32 v{vT}, {sT0}''')
for i in range(8):
    a(f'ds_read_b64 v[{D_+2*i}:{D_+2*i+1}], v{vCr} offset:{i*8192}')
a(f'''ds_read_b128 {q(D_+16)}, v{vT}
ds_read_b128 {q(D_+20)}, v{vT} offset:16
s_add_u32 {sT0}, {sLay}, {hex(CPY)}
s_waitcnt lgkmcnt(2)''')
def pk(d, x, y, op='add'):
    a(f'v_pk_{op}_f32 v[{d}:{d+1}], v[{x}:{x+1}], v[{y}:{y+1}]')
for i in range(4):
    pk(D_ + 4*i, D_ + 4*i, D_ + 4*i + 2)
a('s_waitcnt lgkmcnt(0)')
pk(D_ + 16, D_ + 16, D_ + 18)
pk(D_ + 20, D_ + 20, D_ + 22)
pk(D_, D_, D_ + 4)
pk(D_ + 16, D_ + 16, D_ + 20)
pk(D_ + 8, D_ + 8, D_ + 12)
a(f'v_add_f32 v{D_+16}, v{D_+16}, v{D_+17}')
pk(D_, D_, D_ + 8)
a(f'''v_rcp_f32 v{D_+17}, v{D_+16}
v_log_f32 v{D_+16}, v{D_+16}
v_mul_f32 v{D_}, v{D_}, v{D_+17}
v_mul_f32 v{D_+1}, v{D_+1}, v{D_+17}
v_add_f32 v{D_+16}, v{D_+16}, v{vM}
v_cvt_pk_bf16_f32 v{D_}, v{D_}, v{D_+1}
v_min_u32 v{D_+16}, -2, v{D_+16}
v_min_u32 v{D_}, -2, v{D_}
buffer_store_dword v{D_}, v{vPo}, {WS}, {sLay} offen
buffer_store_dword v{D_+16}, v{vPl}, {WS}, {sLay} offen
buffer_store_dword v{D_}, v{vPo}, {WS}, {sT0} offen sc1
buffer_store_dword v{D_+16}, v{vPl}, {WS}, {sT0} offen sc1''')
stamp(6)
a('s_branch L_A_NEXT')
a.label('L_A_RED')
a(f'''s_cmp_eq_u32 {sLay}, 0
s_cbranch_scc1 L_A_RED_GO
s_and_b32 {sT0}, {sJ}, 7
s_cmp_lg_u32 {sT0}, {sG}
s_cbranch_scc1 L_A_NEXT''')
a.label('L_A_RED_GO')
def resc():
    a(f'v_cmp_gt_u32 vcc, 8, v{vC}')
    for r in range(4):
        a(f'v_cndmask_b32 v{RESC+r}, 0, v{RES+r}, vcc')
def finish_red():
    for r in range(4):
        a(f'v_add_f32_dpp v{vT+r}, v{DL+r}, v{DL+r} row_ror:8 row_mask:0xf bank_mask:0xf')
    a(f'''v_cvt_pk_bf16_f32 v{vT+4}, v{vT}, v{vT+1}
    v_cvt_pk_bf16_f32 v{vT+5}, v{vT+2}, v{vT+3}''')
resc()
poll(lambda so: a(f'buffer_load_dwordx4 {q(D_)}, v{vRx}, {WS}, {so} offen sc1'), range(D_, D_ + 4), vT, sXb, False)
stamp(7)
mfma(DL, SEL, D_, RESC)
finish_red()
unpack4(RES, vT + 4)
resc()
a(f's_add_u32 {sFb2}, {sFb}, 0x1000')
def issue_fp(so):
    for i in range(7):
        a(f'buffer_load_dwordx4 {q(D_+4*i)}, v{vRf}, {WS}, {sFb if i < 4 else sFb2} offen offset:{(i&3)*1024} sc1')
poll(issue_fp, range(D_, D_ + 28), vT, sFb, False)
stamp(8)
for i in range(7):
    mfma(DL, SEL, D_ + 4*i, DL if i else RESC)
finish_red()
a(f'''s_cmp_lg_u32 {sLay}, 0
s_cbranch_scc1 L_A_OUT
s_lshl_b32 {sT0}, {sG}, 12
s_add_u32 {sT0}, {sT0}, {sX2b}
s_add_u32 {sT0}, {sT0}, {hex(X2A)}
s_add_u32 {sT1}, {sT0}, {hex(CPY)}
v_min_u32 v{vT+4}, -2, v{vT+4}
v_min_u32 v{vT+5}, -2, v{vT+5}
buffer_store_dwordx2 v[{vT+4}:{vT+5}], v{vRo}, {WS}, {sT0} offen
buffer_store_dwordx2 v[{vT+4}:{vT+5}], v{vRo}, {WS}, {sT1} offen sc1''')
stamp(9)
unpack4(RES, vT + 4)
a('s_branch L_A_NEXT')
a.label('L_A_OUT')
a(f'buffer_store_dwordx2 v[{vT+4}:{vT+5}], v{vRo}, {R3}, {sX2b} offen')
stamp(9)
a.label('L_A_NEXT')
dump_stamps(vT, vT + 1)
a(f'''s_cmp_lg_u32 {sLay}, 0
s_cbranch_scc1 L_END
s_mov_b32 {sLay}, {hex(LAY)}
s_add_u32 {sQb}, {sQb}, {hex(LAY)}
s_add_u32 {sXb}, {sXb}, {hex(LAY)}
s_add_u32 {sFb}, {sFb}, {hex(LAY)}
s_barrier''')
a.settle()
a('s_branch L_A_LOOP')

a.label('L_ROLE_B')
sI, sWq, sWo, sQo, sXo, sOo, sXp, sFo = 's64', 's65', 's66', 's67', 's68', 's69', 's71', 's72'
vDo, vZ, vTr, vLs, vAc, vSt, vRd, vRs, vQs, vRz, vGo, vFs, vFr, vFt = 4, 5, 7, 8, 9, 10, 11, 12, 13, 14, 15, 16, 17, 18
vFl = 19
WQ, W1, W2R, W2T, WO = 20, 36, 52, 84, 36
X_, ON, D0, D1, G0, G1, SL, SH, RES = 116, 124, 128, 132, 136, 140, 144, 148, 152
LD = 52
OL = 68
vT = 156
XD, CSQ, CSF = 172, 174, 176
SC = 180
LR = 0x8000
LA = 0x18000
ST_OFF, DUMP_OFF, CS_OFF = 0x1000, 0x1100, 0x1400
a(f"""s_sub_u32 {sI}, {sM}, 16
v_lshlrev_b32 v{vT}, 4, v{vL}
v_mov_b32 v{vT+4}, -1
v_mov_b32 v{vT+5}, -1
v_mov_b32 v{vT+6}, -1
v_mov_b32 v{vT+7}, -1
s_lshl_b32 {sT0}, {sI}, 3
s_add_u32 {sT0}, {sT0}, {sG}
s_mul_i32 {sT0}, {sT0}, {21 * 1024}
v_lshrrev_b32 v{vT+1}, 2, v{vL}
v_and_b32 v{vT+2}, 3, v{vL}
v_lshlrev_b32 v{vT+2}, 4, v{vT+2}
v_lshl_add_u32 v{vDo}, v{vT+1}, 13, v{vT+2}
s_lshl_b32 {sWq}, {sW}, 19
s_lshl_b32 {sT1}, {sG}, 10
s_add_u32 {sWq}, {sWq}, {sT1}
s_lshl_b32 {sT1}, {sI}, 6
s_add_u32 {sWq}, {sWq}, {sT1}
s_lshl_b32 {sT1}, {sW}, 12
s_mov_b32 m0, {sT1}
v_lshrrev_b32 v{vT+3}, 2, v{vC}
v_lshrrev_b32 v{vT+8}, 1, v{vG}
v_and_b32 v{vT+9}, 1, v{vG}
v_lshl_add_u32 v{vRz}, v{vT+8}, 6, v{vT+2}
v_lshl_add_u32 v{vRz}, v{vT+9}, 3, v{vRz}
v_lshl_add_u32 v{vRz}, v{vT+3}, 10, v{vRz}
s_lshl_b32 {sXo}, {sW}, 7
s_lshl_b32 {sPo}, {sW}, 3
s_or_b32 {sPo}, {sPo}, {sI}
s_waitcnt lgkmcnt(0)""")
stamp(10)
srd(40, 36, WSN)
a(f"""s_cmp_ge_u32 {sPo}, 8
s_cbranch_scc1 L_B_NOINIT""")
for k in range(0 if XK & 4 else 21):
    a(f'buffer_store_dwordx4 {q(vT+4)}, v{vT}, {WS}, {sT0} offen offset:{(k&3)*1024} sc1')
    if k & 3 == 3:
        a(f's_add_u32 {sT0}, {sT0}, 0x1000')
a.label('L_B_NOINIT')
srd(48, 22, 0 if XK & 2 else 0x400000)
srd(44, 16, 4096)
for i in range(4):
    a(f'buffer_load_dwordx4 v{vDo}, {R1}, {sWq} offen offset:{i*1024} {NTW} lds')
    if i < 3:
        a(f's_add_u32 {sWq}, {sWq}, {16*8192 - 1024}')
a(f'buffer_load_dwordx2 v[{XD}:{XD+1}], v{vRz}, {XS}, {sXo} offen')
stamp(1)
srd(60, 34, 256)
if DIAG:
    srd(76, 36, 0x400000)
a(f"""v_mov_b32 v{vZ}, 0
v_mov_b32 v{vGo}, 0
s_cmp_ge_u32 {sI}, 8
s_cbranch_scc1 L_B_PRO_O
s_cmp_lg_u32 {sW}, 0
s_cbranch_scc1 L_B_PRO_DONE
v_mov_b32 v{vFl}, 1
s_mov_b64 exec, 1
s_waitcnt vmcnt(5)
buffer_atomic_add v{vFl}, v{vZ}, {DBG}, 0 offen offset:128 sc0
s_waitcnt vmcnt(0)
v_readfirstlane_b32 {sT0}, v{vFl}
s_cmp_lg_u32 {sT0}, 63
s_cbranch_scc1 L_B_NOGO
buffer_store_dword v{vFl}, v{vZ}, {DBG}, 0 offen offset:64 sc1""")
a.label('L_B_NOGO')
a("""s_mov_b64 exec, -1
s_branch L_B_PRO_DONE""")
a.label('L_B_PRO_O')
srd(52, 24, 0 if XK & 2 else 0x400000)
a(f"""s_lshl_b32 {sWo}, {sG}, 19
s_lshr_b32 {sT0}, {sW}, 1
s_lshl_b32 {sT0}, {sT0}, 17
s_add_u32 {sWo}, {sWo}, {sT0}
s_sub_u32 {sT0}, {sI}, 8
s_lshl_b32 {sT0}, {sT0}, 7
s_add_u32 {sWo}, {sWo}, {sT0}
s_and_b32 {sT0}, {sW}, 1
s_lshl_b32 {sT0}, {sT0}, 6
s_add_u32 {sWo}, {sWo}, {sT0}
v_lshl_add_u32 v{vGo}, v{vT+1}, 10, v{vT+2}""")
def wo_dma(lo, hi):
    for i in range(lo, hi):
        if i % 4 == 0 or i == lo:
            a(f"""s_lshl_b32 {sT1}, {sW}, 13
            s_add_u32 {sT1}, {sT1}, {LR + (i//4)*4096}
            s_mov_b32 m0, {sT1}""")
        a(f"""s_add_u32 {sT0}, {sWo}, {i*16*1024 - (i&3)*1024}
        buffer_load_dwordx4 v{vGo}, {R2}, {sT0} offen offset:{(i&3)*1024} {NTW} lds""")
wo_dma(0, NWO_EARLY)
a.label('L_B_PRO_DONE')
a(f"""v_lshrrev_b32 v{vTr}, 1, v{vT+2}
v_lshl_add_u32 v{vTr}, v{vT+3}, 6, v{vTr}
v_lshl_add_u32 v{vLs}, v{vG}, 9, v{vTr}
v_lshl_add_u32 v{vTr}, v{vT+9}, 8, v{vTr}
v_lshl_add_u32 v{vTr}, v{vT+8}, 11, v{vTr}
s_lshl_b32 {sT0}, {sW}, 12
v_add_u32 v{vTr}, {sT0}, v{vTr}
s_lshl_b32 {sT0}, {sW}, 9
s_add_u32 {sT0}, {sT0}, {hex(LA)}
v_lshlrev_b32 v{vAc}, 2, v{vC}
v_lshl_add_u32 v{vAc}, v{vG}, 7, v{vAc}
v_add_u32 v{vAc}, {sT0}, v{vAc}
v_lshlrev_b32 v{vRd}, 3, v{vL}
v_add_u32 v{vT+5}, {hex(LA + DUMP_OFF)}, v{vRd}
v_add_u32 v{vRd}, {hex(LA)}, v{vRd}
v_lshlrev_b32 v{vRs}, 6, v{vG}
v_add_u32 v{vRs}, {hex(LA + ST_OFF)}, v{vRs}
s_lshl_b32 {sT0}, {sW}, 3
v_add_u32 v{vT+4}, {sT0}, v{vRs}
v_lshlrev_b32 v{vT+6}, 2, v{vG}
v_cmp_eq_u32 vcc, v{vT+6}, v{vC}
v_cndmask_b32 v{vSt}, v{vT+5}, v{vT+4}, vcc
v_lshlrev_b32 v{vQs}, 2, v{vC}
v_lshl_add_u32 v{vQs}, v{vG}, 10, v{vQs}
s_lshl_b32 {sQo}, {sG}, 12
s_lshl_b32 {sT0}, {sI}, 6
s_add_u32 {sQo}, {sQo}, {sT0}
v_mov_b32 v{vFs}, {hex(BIG)}""")
for i in range(4):
    a(f'v_mov_b32 v{ON+i}, 0x3f803f80')
a(f"""s_cmp_lt_u32 {sI}, 8
s_cbranch_scc1 L_B_W0
s_waitcnt vmcnt({NWO_EARLY})
s_branch L_B_W1""")
a.label('L_B_W0')
a('s_waitcnt vmcnt(0)')
a.label('L_B_W1')
stamp(2)
def tr_tile(Wr, base):
    for t in range(2):
        for j in range(2):
            for h in range(2):
                r = Wr + 8*t + 4*j + 2*h
                a(f'ds_read_b64_tr_b16 v[{r}:{r+1}], v{vTr} offset:{base + t*1024 + h*512 + j*32}')
def read8(vaddr, off):
    for i in range(4):
        a(f'ds_read2st64_b64 {q(SC+4*i)}, v{vaddr} offset0:{off//512 + 2*i} offset1:{off//512 + 2*i+1}')
def sum8(dst, base):
    for i in range(4):
        pk(base + 4*i, base + 4*i, base + 4*i + 2)
    pk(base, base, base + 4)
    pk(base + 8, base + 8, base + 12)
    pk(dst, base, base + 8)
def colsum(Wr, vrd, dst):
    a('s_waitcnt lgkmcnt(0)')
    for j, d in ((0, D0), (1, D1)):
        mfma(d, ON, Wr + 4*j)
    for j, d in ((0, D0), (1, D1)):
        mfma(d, ON, Wr + 8 + 4*j, d)
    a(f"""ds_write_b32 v{vAc}, v{D0} offset:{CS_OFF}
    ds_write_b32 v{vAc}, v{D1} offset:{CS_OFF + 64}
    s_waitcnt lgkmcnt(0)
    s_barrier""")
    read8(vrd, CS_OFF)
    a('s_waitcnt lgkmcnt(0)')
    sum8(dst, SC)
tr_tile(WQ, 0)
colsum(WQ, vRd, CSQ)
a(f"""s_cmp_lg_u32 {sW}, 0
s_cbranch_scc1 L_B_QGO""")
flag_spin(vFl, vZ)
a('s_branch L_B_QGO')

a.label('L_B_LOOP')
poll(lambda so: a(f'buffer_load_dwordx2 v[{XD}:{XD+1}], v{vRz}, {WS}, {so} offen sc1'), [XD, XD + 1], vT, sXo, True)
a.label('L_B_QGO')
stamp(3)
def gemv32(Wr, src):
    def bc(ch):
        for r in range(2):
            a(f'v_mov_b32_dpp v{X_ + 2*ch + r}, v{src+r} quad_perm:[{ch},{ch},{ch},{ch}] row_mask:0xf bank_mask:0xf')
    for ch in range(4):
        bc(ch)
    mfma(D0, X_, Wr)
    mfma(D1, X_, Wr + 4)
    mfma(D0, X_ + 4, Wr + 8, D0)
    mfma(D1, X_ + 4, Wr + 12, D1)
    mfma(G0, X_, X_)
    mfma(G1, X_, ON)
    mfma(G0, X_ + 4, X_ + 4, G0)
    mfma(G1, X_ + 4, ON, G1)
    a(f"""ds_write2_b32 v{vAc}, v{D0}, v{D1} offset0:0 offset1:16
    ds_write2_b32 v{vSt}, v{G0}, v{G1} offset0:0 offset1:1
    s_waitcnt lgkmcnt(0)
    s_barrier""")
def ln_finish(vraw, vst, cs):
    for i in range(4):
        a(f'ds_read_b128 {q(SC+16+4*i)}, v{vst} offset:{16*i}')
    read8(vraw, 0)
    a('s_waitcnt lgkmcnt(4)')
    sum8(vT + 8, SC + 16)
    a(f"""v_mul_f32 v{vT+9}, {hex(f2u(1/512))}, v{vT+9}
    v_mul_f32 v{vT+8}, {hex(f2u(1/512))}, v{vT+8}
    v_fma_f32 v{vT+8}, -v{vT+9}, v{vT+9}, v{vT+8}
    v_max_f32 v{vT+8}, 0, v{vT+8}
    v_add_f32 v{vT+8}, {hex(f2u(1e-5))}, v{vT+8}
    v_rsq_f32 v{vT+8}, v{vT+8}
    s_waitcnt lgkmcnt(0)""")
    sum8(vT + 4, SC)
    a(f"""v_fma_f32 v{vT+4}, -v{vT+9}, v{cs}, v{vT+4}
    v_fma_f32 v{vT+5}, -v{vT+9}, v{cs+1}, v{vT+5}
    v_mul_f32 v{vT+4}, v{vT+4}, v{vT+8}
    v_mul_f32 v{vT+5}, v{vT+5}, v{vT+8}""")
gemv32(WQ, XD)
a(f"""s_cmp_lg_u32 {sW}, 0
s_cbranch_scc1 L_B_QDONE
s_add_u32 {sT0}, {sQo}, {hex(CPY)}""")
ln_finish(vRd, vRs, CSQ)
a(f"""v_cvt_pk_bf16_f32 v{vT+4}, v{vT+4}, v{vT+5}
v_min_u32 v{vT+4}, -2, v{vT+4}
buffer_store_dword v{vT+4}, v{vQs}, {WS}, {sQo} offen
buffer_store_dword v{vT+4}, v{vQs}, {WS}, {sT0} offen sc1""")
a.label('L_B_QDONE')
stamp(4)
a(f"""s_cmp_ge_u32 {sI}, 8
s_cbranch_scc1 L_B_O
s_cmp_eq_u32 {sI}, 7
s_cbranch_scc1 L_B_NEXT
s_cmp_lg_u32 {sLay}, 0
s_cbranch_scc1 L_B_F""")
srd(52, 28, 512 * 3584)
srd(56, 30, 1792 * 1024)
a(f"""s_mul_i32 {sFo}, {sG}, 7
s_add_u32 {sFo}, {sFo}, {sI}
s_mul_i32 {sT0}, {sW}, {64 * 3584}
s_lshl_b32 {sT1}, {sFo}, 6
s_add_u32 {sT0}, {sT0}, {sT1}
s_lshl_b32 {sT1}, {sW}, 12
s_add_u32 {sT1}, {sT1}, {hex(LR)}
s_mov_b32 m0, {sT1}
v_lshrrev_b32 v{vT}, 2, v{vL}
v_mul_u32_u24 v{vT}, 3584, v{vT}
v_and_b32 v{vT+1}, 3, v{vL}
v_lshl_add_u32 v{vT}, v{vT+1}, 4, v{vT}""")
for i in range(4):
    a(f'buffer_load_dwordx4 v{vT}, {R2}, {sT0} offen offset:{i*1024} {NTW} lds')
    if i < 3:
        a(f's_add_u32 {sT0}, {sT0}, {16*3584 - 1024}')
a(f"""s_cmp_ge_u32 {sW}, 4
s_cbranch_scc1 L_B_NOW2
s_lshl_b32 {sT0}, {sFo}, 15
s_lshl_b32 {sT1}, {sW}, 8
s_add_u32 {sT0}, {sT0}, {sT1}
s_add_u32 {sT1}, {sT0}, 0x1000
v_lshlrev_b32 v{vT}, 4, v{vC}
v_lshl_add_u32 v{vT}, v{vG}, 13, v{vT}""")
for i in range(8):
    a(f'buffer_load_dwordx4 {q(W2R+4*i)}, v{vT}, {R3}, {sT0 if i < 4 else sT1} offen offset:{(i&3)*1024} {NTW}')
a.label('L_B_NOW2')
a(f"""v_lshrrev_b32 v{vT+4}, 2, v{vC}
v_and_b32 v{vT+5}, 3, v{vC}
v_lshlrev_b32 v{vGo}, 4, v{vT+5}
v_lshl_add_u32 v{vGo}, v{vT+4}, 7, v{vGo}
v_lshl_add_u32 v{vGo}, v{vG}, 9, v{vGo}
s_lshl_b32 {sXp}, {sW}, 12
s_add_u32 {sXp}, {sXp}, {hex(XP)}
v_lshlrev_b32 v{vFr}, 3, v{vT+5}
v_lshl_add_u32 v{vFr}, v{vG}, 5, v{vFr}
v_lshl_add_u32 v{vFr}, v{vT+4}, 7, v{vFr}
v_add_u32 v{vFr}, {hex(LA)}, v{vFr}
v_lshlrev_b32 v{vFt}, 6, v{vT+4}
v_add_u32 v{vFt}, {hex(LA + ST_OFF)}, v{vFt}
v_lshrrev_b32 v{vT+4}, 3, v{vC}
v_lshl_add_u32 v{vT+4}, v{vG}, 3, v{vT+4}
v_mul_u32_u24 v{vFs}, 7168, v{vT+4}
v_and_b32 v{vT+4}, 7, v{vC}
v_lshl_add_u32 v{vFs}, v{vT+4}, 4, v{vFs}
s_lshl_b32 {sFo}, {sFo}, 7
s_mul_i32 {sT0}, {sW}, {2 * 7168}
s_add_u32 {sFo}, {sFo}, {sT0}
s_add_u32 {sFo}, {sFo}, {hex(FP)}
v_xor_b32 v{vT+4}, 8, v{vC}""")
selector(SL, vC, vT + 8)
selector(SH, vT + 4, vT + 8)
a('s_waitcnt vmcnt(0)')
tr_tile(W1, LR)
for i in range(4):
    perm_pair(W2R, W2T, i)
colsum(W1, vFr, CSF)
a.label('L_B_F')
unpack4(RES, XD)
stamp(5)
def issue_xp(so):
    for hf in range(2):
        for pg in range(2):
            a(f'buffer_load_dwordx4 {q(LD + 8*hf + 4*pg)}, v{vGo}, {WS}, {so} offen offset:{pg*2048 + hf*64} sc1')
poll(issue_xp, range(LD, LD + 16), vT, sXp, False)
stamp(6)
mfma(D0, SL, LD, RES)
mfma(D0, SL, LD + 4, D0)
mfma(D0, SH, LD + 8, D0)
mfma(D0, SH, LD + 12, D0)
a(f"""v_cvt_pk_bf16_f32 v{vT}, v{D0}, v{D0+1}
v_cvt_pk_bf16_f32 v{vT+1}, v{D0+2}, v{D0+3}""")
gemv32(W1, vT)
stamp(7)
a(f"""s_cmp_ge_u32 {sW}, 4
s_cbranch_scc1 L_B_NEXT""")
ln_finish(vFr, vFt, CSF)
fine(9)
a(f"""v_mul_f32 v{vT+6}, {hex(f2u(-1.4426950408889634))}, v{vT+4}
v_mul_f32 v{vT+7}, {hex(f2u(-1.4426950408889634))}, v{vT+5}
v_exp_f32 v{vT+6}, v{vT+6}
v_exp_f32 v{vT+7}, v{vT+7}
v_add_f32 v{vT+6}, 1.0, v{vT+6}
v_add_f32 v{vT+7}, 1.0, v{vT+7}
v_rcp_f32 v{vT+6}, v{vT+6}
v_rcp_f32 v{vT+7}, v{vT+7}
v_mul_f32 v{vT+4}, v{vT+4}, v{vT+6}
v_mul_f32 v{vT+5}, v{vT+5}, v{vT+7}
v_cvt_pk_bf16_f32 v{vT+4}, v{vT+4}, v{vT+5}""")
for ch in range(4):
    a(f'v_mov_b32_dpp v{X_ + ch}, v{vT+4} quad_perm:[{ch},{ch},{ch},{ch}] row_mask:0xf bank_mask:0xf')
fine(10)
for j in range(8):
    mfma(LD + 4*j, X_, W2T + 4*j)
fine(1)
for i in range(4):
    a(f'v_cvt_pk_bf16_f32 v{vT+i}, v{LD+8*i}, v{LD+8*i+4}')
for i in range(4):
    a(f'v_min_u32 v{vT+i}, -2, v{vT+i}')
fine(2)
a(f'buffer_store_dwordx4 {q(vT)}, v{vFs}, {WS}, {sFo} offen sc1')
stamp(8)
a('s_branch L_B_NEXT')
a.label('L_B_O')
a(f"""s_cmp_lg_u32 {sLay}, 0
s_cbranch_scc1 L_B_OGO""")
wo_dma(NWO_EARLY, 8)
a(f"""s_lshl_b32 {sT0}, {sW}, 13
s_add_u32 {sT0}, {sT0}, {hex(LR)}
v_add_u32 v{vT+7}, {sT0}, v{vLs}
s_lshl_b32 {sOo}, {sG}, 14
s_lshr_b32 {sT0}, {sW}, 1
s_lshl_b32 {sT1}, {sT0}, 12
s_add_u32 {sOo}, {sOo}, {sT1}
s_add_u32 {sOo}, {sOo}, {hex(OA)}
v_lshlrev_b32 v{vGo}, 4, v{vL}
v_add_u32 v{vFr}, {hex(LA)}, v{vGo}
v_add_u32 v{vGo}, {sOo}, v{vGo}
s_lshl_b32 {sOo}, {sG}, 8
s_lshl_b32 {sT1}, {sT0}, 6
s_add_u32 {sOo}, {sOo}, {sT1}
s_add_u32 {sOo}, {sOo}, {hex(LSEA)}
v_lshlrev_b32 v{vLs}, 4, v{vG}
v_add_u32 v{vLs}, {sOo}, v{vLs}
s_lshl_b32 {sT1}, {sT0}, 10
s_and_b32 {sT0}, {sW}, 1
s_lshl_b32 {sT0}, {sT0}, 7
s_add_u32 {sT0}, {sT0}, {sT1}
s_add_u32 {sT0}, {sT0}, {hex(LA)}
v_lshlrev_b32 v{vFt}, 2, v{vC}
v_lshl_add_u32 v{vFt}, v{vG}, 8, v{vFt}
v_add_u32 v{vFt}, {sT0}, v{vFt}
v_lshlrev_b32 v{vFs}, 3, v{vL}
v_mov_b32 v{vT}, {hex(BIG)}
v_and_b32 v{vT+1}, 1, v{vL}
v_cmp_eq_u32 vcc, 0, v{vT+1}
v_cndmask_b32 v{vFs}, v{vT}, v{vFs}, vcc
s_sub_u32 {sFo}, {sI}, 8
s_lshl_b32 {sFo}, {sFo}, 12
s_lshl_b32 {sT0}, {sG}, 9
s_add_u32 {sFo}, {sFo}, {sT0}
s_add_u32 {sFo}, {sFo}, {hex(XP)}
s_waitcnt vmcnt(0)""")
for t in range(4):
    for j in range(2):
        for h in range(2):
            r = WO + 8*t + 4*j + 2*h
            a(f'ds_read_b64_tr_b16 v[{r}:{r+1}], v{vT+7} offset:{t*2048 + h*256 + j*32}')
a('s_waitcnt lgkmcnt(0)')
a.label('L_B_OGO')
stamp(5)
E, EW = OL + 16, OL + 20
poll(lambda so: a(f'buffer_load_dwordx4 {q(E)}, v{vLs}, {WS}, {so} offen sc1'), range(E, E + 4), vT, sLay, True)
stamp(9)
def issue_o(so):
    for t in range(4):
        a(f'buffer_load_dwordx4 {q(OL+4*t)}, v{vGo}, {WS}, {so} offen offset:{t*1024} sc1')
    a(f"""v_max3_f32 v{vT}, v{E}, v{E+1}, v{E+2}
    v_max_f32 v{vT}, v{vT}, v{E+3}""")
    for s_ in range(4):
        a(f'v_sub_f32 v{EW+s_}, v{E+s_}, v{vT}')
    for s_ in range(4):
        a(f'v_exp_f32 v{EW+s_}, v{EW+s_}')
    a(f"""v_add_f32 v{vT}, v{EW}, v{EW+1}
    v_add_f32 v{vT+1}, v{EW+2}, v{EW+3}
    v_add_f32 v{vT}, v{vT}, v{vT+1}
    v_rcp_f32 v{vT}, v{vT}""")
    for s_ in range(4):
        a(f'v_mul_f32 v{EW+s_}, v{EW+s_}, v{vT}')
poll(issue_o, range(OL, OL + 16), vT, sLay, True)
stamp(6)
for t in range(4):
    mfma(D0, OL + 4*t, WO + 8*t, D0 if t else None)
    mfma(D1, OL + 4*t, WO + 8*t + 4, D1 if t else None)
a(f'v_mul_f32 v{vT}, v{D0}, v{EW}')
for s_ in range(1, 4):
    a(f'v_fmac_f32 v{vT}, v{D0+s_}, v{EW+s_}')
a(f'v_mul_f32 v{vT+1}, v{D1}, v{EW}')
for s_ in range(1, 4):
    a(f'v_fmac_f32 v{vT+1}, v{D1+s_}, v{EW+s_}')
a(f"""ds_write2_b32 v{vFt}, v{vT}, v{vT+1} offset0:0 offset1:16
s_waitcnt lgkmcnt(0)
s_barrier""")
stamp(7)
a(f"""s_cmp_lg_u32 {sW}, 0
s_cbranch_scc1 L_B_NEXT""")
for i in range(4):
    a(f'ds_read_b128 {q(SC+4*i)}, v{vFr} offset:{1024*i}')
a('s_waitcnt lgkmcnt(2)')
pk(SC, SC, SC + 4)
pk(SC + 2, SC + 2, SC + 6)
a('s_waitcnt lgkmcnt(0)')
pk(SC + 8, SC + 8, SC + 12)
pk(SC + 10, SC + 10, SC + 14)
pk(SC, SC, SC + 8)
pk(SC + 2, SC + 2, SC + 10)
a(f"""v_cvt_pk_bf16_f32 v{vT}, v{SC}, v{SC+1}
v_cvt_pk_bf16_f32 v{vT+1}, v{SC+2}, v{SC+3}
v_min_u32 v{vT}, -2, v{vT}
v_min_u32 v{vT+1}, -2, v{vT+1}
v_mov_b32_dpp v{vT+2}, v{vT} quad_perm:[1,1,3,3] row_mask:0xf bank_mask:0xf
v_mov_b32_dpp v{vT+3}, v{vT+1} quad_perm:[1,1,3,3] row_mask:0xf bank_mask:0xf
buffer_store_dwordx4 {q(vT)}, v{vFs}, {WS}, {sFo} offen sc1""")
stamp(8)
a.label('L_B_NEXT')
dump_stamps(vT + 12, vT + 13)
a(f"""s_cmp_lg_u32 {sLay}, 0
s_cbranch_scc1 L_END
s_mov_b32 {sLay}, {hex(LAY)}
s_add_u32 {sQo}, {sQo}, {hex(LAY)}
s_add_u32 {sXp}, {sXp}, {hex(LAY)}
s_add_u32 {sFo}, {sFo}, {hex(LAY)}
s_lshl_b32 {sT0}, {sG}, 12
s_add_u32 {sXo}, {sXo}, {sT0}
s_add_u32 {sXo}, {sXo}, {hex(X2A)}""")
a.settle()
a('s_branch L_B_LOOP')
a.label('L_END')
a('s_endpgm')

ref = open('cdna_kernels/' + NAME + '.s.ref').read().split('\n')
head = [l for l in ref if l.startswith(';') and '@launch' not in l]
LDS = 0x1A400
nv = max(a.maxv + 1, 136)
out = '\n'.join(head) + f'''
; @launch grid=(256,1,1) block=(512,1,1) lds={LDS}
.amdgcn_target "amdgcn-amd-amdhsa--gfx950"
.text
.globl {NAME}_kernel
.p2align 8
.type {NAME}_kernel,@function
{NAME}_kernel:
''' + a.text() + f'''.section .rodata,"a"
.p2align 6
.amdhsa_kernel {NAME}_kernel
  .amdhsa_next_free_vgpr {nv}
  .amdhsa_next_free_sgpr 102
  .amdhsa_accum_offset {(nv + 3) // 4 * 4}
  .amdhsa_group_segment_fixed_size 0
  .amdhsa_kernarg_size 88
  .amdhsa_user_sgpr_count 2
  .amdhsa_user_sgpr_kernarg_segment_ptr 1
  .amdhsa_system_sgpr_workgroup_id_x 1
  .amdhsa_float_denorm_mode_32 3
.end_amdhsa_kernel
'''
dst = [x for x in sys.argv[1:] if not x.startswith('--')]
open(dst[0] if dst else 'cdna_kernels/' + NAME + '.s', 'w').write(out)
print('vgprs', nv, 'sgpr max', a.maxs, 'lines', len(a.lines), file=sys.stderr)
```
